```python
import torch

def _softmax(x, axis=-1):
    return torch.softmax(x, dim=axis)
def _gelu(x):
    return torch.nn.functional.gelu(x, approximate="tanh")
def _silu(x):
    return torch.nn.functional.silu(x)
def _sigmoid(x):
    return torch.sigmoid(x)
def _layernorm(x, axis=-1, eps=1e-5):
    m = x.mean(dim=axis, keepdim=True)
    v = x.var(dim=axis, keepdim=True, unbiased=False)
    return (x - m) / torch.sqrt(v + eps)
def _scatter_add(tgt, idx, src, axis=0):
    return tgt.clone().index_add_(axis, idx, src)
def _segment_sum(src, seg, n):
    out = torch.zeros((n,) + src.shape[1:], dtype=src.dtype)
    return out.index_add_(0, seg, src)
def _pad(x, pw):
    flat = tuple(v for pair in reversed(pw) for v in pair)
    return torch.nn.functional.pad(x, flat)

kernel_name = 'concat_heads__gqa_block_cached__mha_block_cached__near_ridge'

def setup_inputs():

    _w = (lambda a: (lambda t: t.to(torch.bfloat16) if t.is_floating_point() else t)(torch.as_tensor(a)))
    def _A_setup():
        B, Sq, D = 8, 64, 448
        Hq, Hkv, Sk, Dh = 16, 8, 512, 256
        assert Hq % Hkv == 0, (Hq, Hkv)
        return {
            "x": _w((lambda *s: torch.randn(*s, dtype=torch.bfloat16) * 0.8)(B, Sq, D)),
            "k_cache": _w((lambda *s: torch.randn(*s, dtype=torch.bfloat16) * 0.8)(B, Hkv, Sk, Dh)),
            "v_cache": _w((lambda *s: torch.randn(*s, dtype=torch.bfloat16) * 0.05)(B, Hkv, Sk, Dh)),
            "wq": _w((lambda *s: torch.randn(*s, dtype=torch.bfloat16) * 0.8)(D, Hq * Dh) * (D ** -0.5)),
            "wo": _w((lambda *s: torch.randn(*s, dtype=torch.bfloat16) * 0.05)(Hq * Dh, D) * ((Hq * Dh) ** -0.5)),
        }
    _A_in = _A_setup()

    def _B_setup():
        B, Sq, D = 8, 64, 448
        H, Sk, Dh = 16, 512, 256
        return {
            "x": _w((lambda *s: torch.randn(*s, dtype=torch.bfloat16) * 0.8)(B, Sq, D)),
            "k_cache": _w((lambda *s: torch.randn(*s, dtype=torch.bfloat16) * 0.8)(B, H, Sk, Dh)),
            "v_cache": _w((lambda *s: torch.randn(*s, dtype=torch.bfloat16) * 0.05)(B, H, Sk, Dh)),
            "wq": _w((lambda *s: torch.randn(*s, dtype=torch.bfloat16) * 0.8)(D, H * Dh) * (D ** -0.5)),
            "wo": _w((lambda *s: torch.randn(*s, dtype=torch.bfloat16) * 0.05)(H * Dh, D) * ((H * Dh) ** -0.5)),
        }
    _B_in = _B_setup()

    return {
        "A_x": _A_in["x"],
        "A_k_cache": _A_in["k_cache"],
        "A_v_cache": _A_in["v_cache"],
        "A_wq": _A_in["wq"],
        "A_wo": _A_in["wo"],
        "B_x": _B_in["x"],
        "B_k_cache": _B_in["k_cache"],
        "B_v_cache": _B_in["v_cache"],
        "B_wq": _B_in["wq"],
        "B_wo": _B_in["wo"],
    }

def reference(A_x, A_k_cache, A_v_cache, A_wq, A_wo, B_x, B_k_cache, B_v_cache, B_wq, B_wo):
    def _A_ref(x, k_cache, v_cache, wq, wo):
        B, Sq, D = x.shape
        Hq, Dh = 16, 256
        Hkv = k_cache.shape[1]
        rep = Hq // Hkv
        q = (lambda x, *d: x.permute(*d))((x @ wq).reshape(B, Sq, Hq, Dh), 0, 2, 1, 3)
        k = (lambda x, n, axis: torch.repeat_interleave(x, n, dim=axis))(k_cache, rep, axis=1)
        v = (lambda x, n, axis: torch.repeat_interleave(x, n, dim=axis))(v_cache, rep, axis=1)
        scores = torch.einsum("bhqd,bhkd->bhqk", q, k) * (Dh ** -0.5)
        p = _softmax(scores, axis=-1)
        o = torch.einsum("bhqk,bhkd->bhqd", p, v)
        return (lambda x, *d: x.permute(*d))(o, 0, 2, 1, 3).reshape(B, Sq, Hq * Dh) @ wo

    def _B_ref(x, k_cache, v_cache, wq, wo):
        B, Sq, D = x.shape
        H, Dh = 16, 256
        q = (lambda x, *d: x.permute(*d))((x @ wq).reshape(B, Sq, H, Dh), 0, 2, 1, 3)
        scores = torch.einsum("bhqd,bhkd->bhqk", q, k_cache) * (Dh ** -0.5)
        p = _softmax(scores, axis=-1)
        o = torch.einsum("bhqk,bhkd->bhqd", p, v_cache)
        return (lambda x, *d: x.permute(*d))(o, 0, 2, 1, 3).reshape(B, Sq, H * Dh) @ wo

    a = _A_ref(A_x, A_k_cache, A_v_cache, A_wq, A_wo)
    b = _B_ref(B_x, B_k_cache, B_v_cache, B_wq, B_wo)
    return torch.concatenate([a, b], axis=-1)
```

```python
import re

TRANS = ("v_exp_f32", "v_rcp_f32", "v_log_f32", "v_rsq_f32", "v_sqrt_f32")


def regs_of(op):
    op = op.strip().lstrip("-")
    m = re.fullmatch(r"([vas])\[(\d+):(\d+)\]", op)
    if m:
        return [(m.group(1), i) for i in range(int(m.group(2)), int(m.group(3)) + 1)]
    m = re.fullmatch(r"([vas])(\d+)", op)
    if m:
        return [(m.group(1), int(m.group(2)))]
    if op == "m0":
        return [("m", 0)]
    if op == "vcc":
        return [("s", 106), ("s", 107)]
    if op == "exec":
        return [("s", 126), ("s", 127)]
    return []


def rng(kind, base, n):
    return f"{kind}{base}" if n == 1 else f"{kind}[{base}:{base + n - 1}]"


class Ins:
    def __init__(self, text, kind, reads=(), writes=(), **kw):
        self.text = text
        self.kind = kind
        self.reads = set(reads)
        self.writes = set(writes)
        self.__dict__.update(kw)

    def states(self):
        if self.kind in ("label", "comment"):
            return 0
        if self.kind == "nop":
            return self.n
        return 1


def _split(ops):
    return [o.strip() for o in ops.split(",")]


def I(text):
    text = text.strip()
    if text.endswith(":"):
        return Ins(text, "label")
    if text.startswith(";") or text.startswith("."):
        return Ins(text, "comment")
    parts = text.split(None, 1)
    mn = parts[0]
    rest = parts[1] if len(parts) > 1 else ""
    if mn == "s_nop":
        return Ins(text, "nop", n=int(rest) + 1)
    if mn in ("s_waitcnt", "s_barrier", "s_endpgm", "s_setprio", "s_sleep", "s_branch") or mn.startswith("s_cbranch"):
        return Ins(text, "ctl")
    if mn.startswith("v_mfma"):
        d, a, b, c = _split(rest)
        passes = 8 if "32x32x16" in mn else 4
        return Ins(text, "mfma", regs_of(a) + regs_of(b) + regs_of(c), regs_of(d),
                   ab=set(regs_of(a) + regs_of(b)), c=regs_of(c), d=regs_of(d), passes=passes)
    if mn.startswith("ds_read"):
        o = _split(rest)
        return Ins(text, "ds", regs_of(o[1].split()[0]), regs_of(o[0]), load=True)
    if mn.startswith("ds_write"):
        o = _split(rest)
        return Ins(text, "ds", regs_of(o[0]) + regs_of(o[1].split()[0]), [], load=False)
    if mn.startswith("buffer_load"):
        o = _split(rest)
        if " lds" in text:
            r = regs_of(o[0]) + regs_of(o[1]) + regs_of(o[2].split()[0]) + [("m", 0)]
            return Ins(text, "vmem", r, [], dma=True, load=True)
        r = regs_of(o[1]) + regs_of(o[2]) + regs_of(o[3].split()[0])
        return Ins(text, "vmem", r, regs_of(o[0]), dma=False, load=True)
    if mn.startswith("buffer_store") or mn.startswith("buffer_atomic"):
        o = _split(rest)
        r = regs_of(o[0]) + regs_of(o[1]) + regs_of(o[2]) + regs_of(o[3].split()[0])
        wide = set(regs_of(o[0])) if ("x4" in mn or "x3" in mn) else set()
        return Ins(text, "vmem", r, [], dma=False, load=False, wide=wide)
    if mn.startswith("buffer_"):
        return Ins(text, "ctl")
    if mn.startswith("s_load") or mn.startswith("s_memtime") or mn.startswith("s_memrealtime"):
        o = _split(rest)
        return Ins(text, "smem", sum((regs_of(x) for x in o[1:]), []), regs_of(o[0]))
    if mn.startswith("s_cmp"):
        o = _split(rest)
        return Ins(text, "salu", sum((regs_of(x) for x in o), []), [])
    if mn.startswith("s_"):
        o = _split(rest)
        return Ins(text, "salu", sum((regs_of(x) for x in o[1:]), []), regs_of(o[0]))
    if mn.startswith("v_"):
        rest = re.split(r"\s+(?:op_sel|neg_lo|neg_hi)", rest)[0]
        o = _split(rest)
        o = [x.split()[0] if x else x for x in o]
        w = regs_of(o[0])
        r = sum((regs_of(x) for x in o[1:]), [])
        if mn.startswith("v_permlane"):
            r += regs_of(o[0])
            w += regs_of(o[1])
        if mn.startswith("v_fmac") or mn.startswith("v_dot2c"):
            r += regs_of(o[0])
        return Ins(text, "valu", r, w, mn=mn, trans=any(mn.startswith(t) for t in TRANS),
                   dot=mn.startswith("v_dot"))
    raise ValueError("unparsed instruction: " + text)


XDL_RAW = {4: 8, 8: 12}
XDL_C_OVERLAP = {4: 6, 8: 10}
XDL_C_WAR = {4: 3, 8: 7}


def required_gap(p, c):
    need = 0
    if p.kind == "valu":
        vw = {r for r in p.writes if r[0] in "va"}
        sw = {r for r in p.writes if r[0] == "s"}
        if c.kind == "mfma" and vw & c.reads:
            need = max(need, 3 if p.dot else 2)
        if c.kind == "valu":
            if c.mn.startswith("v_permlane") and vw & c.reads:
                need = max(need, 2)
            if (c.mn.startswith("v_readfirstlane") or c.mn.startswith("v_readlane")) and vw & c.reads:
                need = max(need, 1)
            if p.trans and not c.trans and vw & c.reads:
                need = max(need, 1)
            if sw & c.reads:
                need = max(need, 2)
            if p.dot and vw & (c.reads | c.writes):
                same_acc = c.dot and c.mn == p.mn and c.writes == p.writes
                if not same_acc:
                    need = max(need, 3)
        if c.kind in ("vmem", "ds") and p.dot and vw & c.reads:
            need = max(need, 3)
        if c.kind == "vmem" and sw & c.reads:
            need = max(need, 5)
        if c.kind == "salu" and sw & c.reads:
            need = max(need, 1)
    if p.kind == "mfma":
        d = set(p.d)
        if c.kind == "mfma":
            if d & c.ab:
                need = max(need, XDL_RAW[p.passes])
            if d & set(c.c) and (c.c != p.d or c.passes != p.passes):
                need = max(need, XDL_C_OVERLAP[p.passes])
        elif c.kind in ("valu", "ds", "vmem"):
            if d & (c.reads | c.writes):
                need = max(need, XDL_RAW[p.passes])
            if c.kind == "valu" and set(p.c) & c.writes:
                need = max(need, XDL_C_WAR[p.passes])
    if p.kind == "salu" and ("m", 0) in p.writes and c.kind == "vmem" and getattr(c, "dma", False):
        need = max(need, 1)
    if p.kind == "vmem" and getattr(p, "wide", None) and p.wide & c.writes:
        need = max(need, 2)
    return need


def pad_hazards(ins, window=24):
    out = []
    for c in ins:
        if c.kind not in ("label", "comment", "nop", "ctl"):
            dist = 0
            pad = 0
            for p in reversed(out):
                if dist >= window:
                    break
                need = required_gap(p, c) if p.kind not in ("label", "comment", "nop", "ctl") else 0
                pad = max(pad, need - dist)
                dist += p.states()
            while pad > 0:
                n = min(pad, 16)
                out.append(I(f"s_nop {n - 1}"))
                pad -= n
        out.append(c)
    return out


def render(ins):
    lines = []
    for i in ins:
        lines.append(i.text if i.kind == "label" or i.text.startswith(".") else "    " + i.text)
    return "\n".join(lines) + "\n"


def interleave(mfmas, fillers, first=0):
    out = []
    fillers = list(fillers)
    for g in fillers[:first]:
        out += g
    fillers = fillers[first:]
    n = len(mfmas)
    if n == 0:
        for g in fillers:
            out += g
        return out
    k = 0
    for i, m in enumerate(mfmas):
        out.append(m)
        left = n - i
        take = -(-(len(fillers) - k) // left)
        for g in fillers[k:k + take]:
            out += g
        k += take
    return out
```

```python
import argparse
import json
import math
import struct
import sys

from asmdsl import I, interleave, pad_hazards, render, rng

NAME = "concat_heads__gqa_block_cached__mha_block_cached__near_ridge"

DEFAULTS = dict(
    lead=3,
    aux_x="", aux_w="", aux_kv="nt", aux_st="sc1", aux_rd="sc1",
    rot=1, wsw=1, psw=0, xsw=0,
    stamps=0,
)

EX = 131072
OOB = 0x80000000

S_X, S_K, S_V, S_WQ, S_WO, S_WS = 8, 12, 16, 20, 24, 28
sW, sQB, sS, sBR, sB, sH, sWSW, sT0, sT1, sT2, sSOFF, sM4096, sC, sXSW = range(58, 72)
sKI, sSL, sWQI, sWOI, sWOJ = 72, 76, 80, 84, 88
sSTAMP = 36

vWqD, vKD, vVD, vWoD = 1, 5, 7, 8
vWqR, vKR, vVRo, vVRp, vWoR = 12, 13, 17, 18, 19
vExOwn, vExPar, vExQ, vExOa, vExOb, vSt = 26, 27, 28, 29, 30, 31
vM, vL0, vL1, vT0, vT1, vT2, vT3, vRL = 32, 33, 34, 35, 36, 37, 38, 39
vCV, vG1, vP, vS = 40, 48, 64, 128
aX, aPP, aB2, aF = 0, 0, 112, 128


def srd(n):
    return f"s[{n}:{n + 3}]"


def tile_list():
    t = [("x", 0, i) for i in range(4)]
    for j in range(4):
        t += [("wq", j, i) for i in range(4)] + [("k", j, i) for i in range(4)]
    for j in range(4):
        t += [("v", j, i) for i in range(4)] + [("wo", j, i) for i in range(4)]
    return t


TILES = tile_list()


class Gen:
    def __init__(self, cfg):
        self.c = cfg
        self.o = []
        self.issued = 0
        self.nstamp = 0

    def e(self, *lines):
        for ln in lines:
            self.o.append(I(ln) if isinstance(ln, str) else ln)

    def stamp(self):
        if self.c["stamps"] and self.nstamp < 10:
            r = sSTAMP + 2 * self.nstamp
            self.e(f"s_memrealtime s[{r}:{r + 1}]")
            self.nstamp += 1

    def make_srd(self, dst, pa, pb, off, nrec):
        self.e(f"s_cmp_eq_u32 s{sBR}, 0",
               f"s_cselect_b32 s{dst}, s{pa}, s{pb}",
               f"s_cselect_b32 s{dst + 1}, s{pa + 1}, s{pb + 1}",
               f"s_add_u32 s{dst}, s{dst}, s{off}",
               f"s_addc_u32 s{dst + 1}, s{dst + 1}, 0",
               f"s_mov_b32 s{dst + 2}, {nrec}",
               f"s_mov_b32 s{dst + 3}, 0x00020000")

    def prologue(self):
        c = self.c
        e = self.e
        e("s_cmp_ge_u32 s2, 256", "s_cbranch_scc1 L_main_end")
        e("s_load_dwordx16 s[36:51], s[0:1], 0",
          "s_load_dwordx4 s[52:55], s[0:1], 64",
          "s_load_dwordx2 s[56:57], s[0:1], 96")
        if c["stamps"]:
            e("s_memrealtime s[94:95]")
        e("v_lshrrev_b32 v40, 6, v0", "v_and_b32 v0, 63, v0", f"v_readfirstlane_b32 s{sW}, v40")
        e("s_and_b32 s3, s2, 7",
          "s_lshr_b32 s4, s2, 3",
          f"s_lshr_b32 s{sBR}, s4, 4",
          f"s_bfe_u32 s{sB}, s4, 0x30001",
          "s_and_b32 s5, s4, 1",
          f"s_lshl_b32 s{sH}, s3, 1",
          f"s_add_u32 s{sH}, s{sH}, s5",
          f"s_and_b32 s{sQB}, s{sW}, 1",
          f"s_lshr_b32 s{sS}, s{sW}, 1",
          f"s_lshl_b32 s{sM4096}, s{sW}, 12")
        if c["xsw"]:
            e(f"s_lshl_b32 s{sXSW}, s5, 1")
        else:
            e(f"s_mov_b32 s{sXSW}, 0")
        if c["wsw"]:
            e(f"s_lshr_b32 s{sWSW}, s{sB}, 2", f"s_lshl_b32 s{sWSW}, s{sWSW}, 1")
        else:
            e(f"s_mov_b32 s{sWSW}, 0")
        e(f"s_mul_i32 s{sT0}, s{sW}, {4 * 896}",
          f"v_lshl_add_u32 v41, v0, 4, s{sT0}",
          f"s_mul_i32 s{sT1}, s{sB}, 57344",
          f"s_mul_i32 s{sT2}, s{sW}, {4 * 912}")
        e("v_lshrrev_b32 v42, 3, v0",
          "v_and_b32 v43, 7, v0",
          "v_bfe_u32 v44, v0, 4, 1",
          "v_lshlrev_b32 v44, 2, v44",
          "v_xor_b32 v44, v44, v43",
          "v_lshlrev_b32 v44, 4, v44",
          f"s_lshl_b32 s6, s{sW}, 18",
          "v_lshl_add_u32 v45, v42, 13, s6",
          f"v_add_u32 v{vWqD}, v45, v44",
          f"v_add_u32 v{vWqD + 1}, {65536 - 1024}, v{vWqD}",
          f"s_cmp_eq_u32 s{sW}, 3",
          f"s_cselect_b32 s6, 0x{OOB:x}, 0",
          f"s_add_u32 s7, s6, {2 * (65536 - 1024)}",
          f"v_add_u32 v{vWqD + 2}, s7, v{vWqD}",
          f"s_add_u32 s7, s6, {3 * (65536 - 1024)}",
          f"v_add_u32 v{vWqD + 3}, s7, v{vWqD}")
        e("s_waitcnt lgkmcnt(0)")
        self.make_srd(S_X, 36, 46, sT1, 57344)
        e("s_mov_b32 exec_hi, 0x00ffffff")
        for i in range(4):
            e(f"s_xor_b32 s6, s{sXSW}, {i}",
              f"s_mul_i32 s{sSOFF}, s6, {16 * 896}",
              "s_lshl_b32 s6, s6, 14",
              f"s_add_u32 s6, s6, s{sT2}")
            for u in range(4):
                e(f"s_add_u32 m0, s6, {16 * u}",
                  f"buffer_load_dwordx4 v41, {srd(S_X)}, s{sSOFF} offen offset:{896 * u} {c['aux_x']} lds")
        e("s_mov_b32 exec_hi, -1")
        self.issued = 4
        e(f"s_lshl_b32 s{sT0}, s{sH}, 9")
        self.make_srd(S_WQ, 42, 52, sT0, 0)
        e(f"s_sub_u32 s{S_WQ + 2}, 3670016, s{sT0}")
        for j in range(4):
            if c["rot"]:
                e(f"s_add_u32 s6, s{sB}, {j}", "s_and_b32 s6, s6, 3")
            else:
                e(f"s_mov_b32 s6, {j}")
            e(f"s_lshl_b32 s{sSL + j}, s6, 7", f"s_mul_i32 s{sWOJ + j}, s6, {64 * 896}")
        if c["psw"]:
            e(f"s_cmp_eq_u32 s{sBR}, 0", "s_cselect_b32 s7, s5, 0", "s_lshl_b32 s7, s7, 1")
        else:
            e("s_mov_b32 s7, 0")
        for i in range(4):
            e(f"s_xor_b32 s6, s7, {i}", f"s_lshl_b32 s{sKI + i}, s6, 16",
              f"s_xor_b32 s6, s{sWSW}, {i}",
              f"s_mul_i32 s{sWQI + i}, s6, {112 * 8192}",
              f"s_mul_i32 s{sWOI + i}, s6, {16 * 896}")
        first = min(8, 3 + c["lead"])
        while self.issued < first:
            for g in self.dma_groups(self.issued):
                e(*g)
            self.issued += 1
        e(f"s_lshl_b32 s6, s{sB}, 4", f"s_add_u32 s6, s6, s{sH}",
          f"s_lshl_b32 s7, s{sB}, 3", "s_add_u32 s7, s7, s3",
          f"s_cmp_eq_u32 s{sBR}, 0", "s_cselect_b32 s6, s7, s6",
          f"s_lshl_b32 s{sT0}, s6, 18")
        self.make_srd(S_K, 38, 48, sT0, 262144)
        self.make_srd(S_V, 40, 50, sT0, 262144)
        e(f"s_mul_i32 s{sT0}, s{sH}, 229376")
        self.make_srd(S_WO, 44, 54, sT0, 229376)
        e(f"s_lshl_b32 s6, s{sBR}, 3", f"s_add_u32 s6, s6, s{sB}", "s_lshl_b32 s6, s6, 4",
          f"s_add_u32 s6, s6, s{sH}", f"s_mul_i32 s{sT0}, s6, 57344",
          f"s_add_u32 s{S_WS}, s56, s{sT0}", f"s_addc_u32 s{S_WS + 1}, s57, 0",
          f"s_mov_b32 s{S_WS + 2}, 57344", f"s_mov_b32 s{S_WS + 3}, 0x00020000")
        if c["stamps"]:
            e("s_mov_b32 s92, s56", "s_mov_b32 s93, s57")
        cbits = struct.unpack("<I", struct.pack("<f", math.log2(math.e) / 16.0))[0]
        e(f"s_mov_b32 s{sC}, 0x{cbits:08x}")
        e("v_and_b32 v45, 1, v42",
          "v_lshrrev_b32 v46, 1, v42",
          "v_lshl_add_u32 v45, v46, 3, v45",
          f"s_lshl_b32 s6, s{sW}, 14",
          "v_lshl_add_u32 v45, v45, 9, s6",
          f"v_add_u32 v{vVD}, v45, v44",
          "v_xor_b32 v46, v46, v43",
          f"v_lshl_add_u32 v{vKD}, v46, 4, v45",
          f"v_xor_b32 v{vKD + 1}, 64, v{vKD}")
        e("v_lshrrev_b32 v45, 2, v0", "v_and_b32 v46, 3, v0", "v_lshlrev_b32 v47, 4, v46",
          f"v_mov_b32 v48, 0x{OOB:x}")
        for u in range(4):
            e(f"s_mul_i32 s6, s{sW}, {4 * 896}", f"s_add_u32 s6, s6, {896 * u}",
              f"v_xor_b32 v49, {u}, v45",
              "v_cmp_gt_u32 vcc, 14, v49",
              "v_lshl_add_u32 v49, v49, 6, v47",
              "v_add_u32 v49, s6, v49",
              f"v_cndmask_b32 v{vWoD + u}, v48, v49, vcc")
        e("v_and_b32 v50, 31, v0",
          "v_lshrrev_b32 v51, 5, v0",
          "v_bfe_u32 v52, v0, 4, 1",
          "v_bfe_u32 v53, v0, 2, 2",
          "v_and_b32 v54, 1, v0",
          "v_lshlrev_b32 v54, 1, v54",
          "v_bfe_u32 v55, v0, 1, 1",
          "v_or_b32 v54, v54, v55",
          "v_lshl_add_u32 v54, v52, 2, v54",
          "v_lshlrev_b32 v54, 3, v54",
          "v_lshl_add_u32 v55, v52, 2, v46",
          "v_lshlrev_b32 v55, 3, v55",
          "v_lshrrev_b32 v56, 1, v53",
          f"v_xor_b32 v56, s{sS}, v56",
          "v_lshlrev_b32 v56, 6, v56",
          "v_lshl_add_u32 v57, v51, 3, v53",
          "v_lshl_add_u32 v57, v57, 7, v56",
          "v_add_u32 v57, v57, v54",
          f"v_add_u32 v{vWqR}, 0x10000, v57",
          "v_lshl_add_u32 v58, v51, 2, v53",
          "v_lshl_add_u32 v57, v58, 7, v56",
          "v_add_u32 v57, v57, v55",
          f"s_lshl_b32 s6, s{sS}, 13", "s_add_u32 s7, s6, 0x10000",
          f"v_add_u32 v{vVRo}, s7, v57",
          f"v_xor_b32 v{vVRp}, 0x2000, v{vVRo}",
          "v_lshl_add_u32 v57, v50, 7, s6",
          "v_bfe_u32 v59, v0, 1, 3",
          "v_xor_b32 v59, v59, v51")
        for k in range(4):
            e(f"v_xor_b32 v60, {2 * k}, v59", f"v_lshl_add_u32 v{vKR + k}, v60, 4, v57")
        e("v_lshl_add_u32 v57, v58, 10, v54", f"s_mul_i32 s6, s{sS}, 7")
        for n in range(7):
            e(f"s_add_u32 s7, s6, {n}", "v_xor_b32 v60, s7, v53",
              f"v_lshl_add_u32 v{vWoR + n}, v60, 6, v57")
        e(f"s_add_u32 s6, s{sM4096}, {EX}",
          f"v_lshl_add_u32 v{vExOwn}, v0, 4, s6",
          f"v_xor_b32 v{vExPar}, 0x2000, v{vExOwn}",
          f"s_lshl_b32 s6, s{sQB}, 12", f"s_add_u32 s6, s6, {EX}",
          f"v_lshl_add_u32 v{vExQ}, v0, 4, s6",
          f"s_lshl_b32 s7, s{sWSW}, 12",
          f"v_add_u32 v{vExOa}, s7, v{vExQ}",
          f"v_xor_b32 v{vExOb}, 0x2000, v{vExOa}",
          f"s_mul_i32 s6, s{sW}, 14336",
          f"v_lshl_add_u32 v{vSt}, v0, 4, s6")
        e("v_lshrrev_b32 v57, 4, v50", f"s_lshl_b32 s6, s{sQB}, 15",
          "v_lshl_add_u32 v57, v57, 14, s6",
          "v_and_b32 v60, 15, v0",
          "v_mul_u32_u24 v60, 912, v60",
          "v_add_u32 v57, v57, v60",
          "v_lshl_add_u32 v57, v51, 4, v57",
          f"s_mul_i32 s6, s{sWSW}, 224",
          "v_add_u32 v61, s6, v57",
          "s_sub_u32 s6, 448, s6",
          "v_add_u32 v62, s6, v57")

    def dma_groups(self, t):
        c = self.c
        kind, j, i = TILES[t]
        slot = (t % 8) * 16384
        g = []
        if kind in ("k", "v"):
            head = [f"s_add_u32 s{sSOFF}, s{sKI + i}, s{sSL + j}", f"s_add_u32 m0, s{sM4096}, {slot}"]
            for u in range(4):
                vo = vKD + (u & 1) if kind == "k" else vVD
                s = S_K if kind == "k" else S_V
                ld = f"buffer_load_dwordx4 v{vo}, {srd(s)}, s{sSOFF} offen offset:{1024 * u} {c['aux_kv']} lds"
                g.append([I(x) for x in (head[::-1] if u == 0 else []) + [ld]])
        elif kind == "wq":
            head = [f"s_add_u32 m0, s{sM4096}, {slot}", f"s_add_u32 s{sSOFF}, s{sWQI + i}, s{sSL + j}"]
            for u in range(4):
                ld = f"buffer_load_dwordx4 v{vWqD + u}, {srd(S_WQ)}, s{sSOFF} offen offset:{1024 * u} {c['aux_w']} lds"
                g.append([I(x) for x in (head if u == 0 else []) + [ld]])
        elif kind == "wo":
            for u in range(4):
                head = [f"s_add_u32 m0, s{sM4096}, {slot + 1024 * u}"]
                if u == 0:
                    head.append(f"s_add_u32 s{sSOFF}, s{sWOI + i}, s{sWOJ + j}")
                ld = f"buffer_load_dwordx4 v{vWoD + u}, {srd(S_WO)}, s{sSOFF} offen {c['aux_w']} lds"
                g.append([I(x) for x in head + [ld]])
        return g

    def frag(self, t, n):
        return aF + 32 * (t & 1) + 4 * n

    def read_groups(self, t):
        kind, j, i = TILES[t]
        base = i * 16384
        g = []
        if kind == "wq":
            for k in range(7):
                f = self.frag(t, k)
                for h in range(2):
                    g.append([I(f"ds_read_b64_tr_b16 {rng('a', f + 2 * h, 2)}, v{vWqR} offset:{base + k * 2048 + h * 512}")])
        elif kind == "k":
            for u2 in range(2):
                for k in range(4):
                    f = self.frag(t, 4 * u2 + k)
                    g.append([I(f"ds_read_b128 {rng('a', f, 4)}, v{vKR + k} offset:{base + u2 * 4096}")])
        elif kind == "v":
            for pp in range(8):
                f = self.frag(t, pp)
                va = vVRo if pp < 4 else vVRp
                for h in range(2):
                    g.append([I(f"ds_read_b64_tr_b16 {rng('a', f + 2 * h, 2)}, v{va} offset:{base + (pp & 3) * 2048 + h * 1024}")])
        elif kind == "wo":
            for n in range(7):
                f = self.frag(t, n)
                for h in range(2):
                    g.append([I(f"ds_read_b64_tr_b16 {rng('a', f + 2 * h, 2)}, v{vWoR + n} offset:{base + h * 8192}")])
        return g

    def mfmas(self, t):
        kind, j, i = TILES[t]
        m = []

        def mf(d, a, b, zero):
            dd = rng('v', d, 16)
            m.append(I(f"v_mfma_f32_32x32x16_bf16 {dd}, {rng('a', a, 4)}, {b}, {'0' if zero else dd}"))
        if kind == "wq":
            for k in range(7):
                mf(vG1, self.frag(t, k), rng('a', aX + 4 * (7 * i + k), 4), i == 0 and k == 0)
        elif kind == "k":
            for k in range(4):
                for u2 in range(2):
                    mf(vS + 16 * (2 * i + u2), self.frag(t, 4 * u2 + k), rng('a', aB2 + 4 * k, 4), j == 0 and k == 0)
        elif kind == "v":
            for pp in range(8):
                b = rng('v', vP + 4 * (4 * i + pp), 4) if pp < 4 else rng('a', aPP + 4 * (4 * i + pp - 4), 4)
                mf(vG1, self.frag(t, pp), b, i == 0 and pp == 0)
        elif kind == "wo":
            for n in range(7):
                mf(vS + 16 * n, self.frag(t, n), rng('a', aB2 + 4 * i, 4), j == 0 and i == 0)
        return m

    def exp_groups(self, i):
        g = []
        for q in range(8):
            r = vS + 32 * i + 4 * q
            g.append([I(f"v_fma_f32 v{r + x}, v{r + x}, s{sC}, -v{vM}") for x in range(4)])
            g.append([I(f"v_exp_f32 v{r + x}, v{r + x}") for x in range(2)])
            g.append([I(f"v_exp_f32 v{r + x}, v{r + x}") for x in range(2, 4)])
            p = vP + 16 * i + 2 * q
            grp = []
            for x in range(4):
                acc = vL0 + (x & 1)
                if i == 0 and q == 0 and x < 2:
                    grp.append(I(f"v_mov_b32 v{acc}, v{r + x}"))
                else:
                    grp.append(I(f"v_add_f32 v{acc}, v{acc}, v{r + x}"))
            g.append(grp)
            g.append([I(f"v_cvt_pk_bf16_f32 v{p}, v{r}, v{r + 1}"), I(f"v_cvt_pk_bf16_f32 v{p + 1}, v{r + 2}, v{r + 3}")])
            if q & 1:
                f = q >> 1
                g.append([I(f"ds_write_b128 v{vExOwn}, {rng('v', vP + 16 * i + 4 * f, 4)} offset:{(i & 1) * 16384 + f * 1024}")])
        return g

    def max_ops(self, lo, hi, first):
        ops = []
        acc = [vT0, vT1]
        n = 0
        for r in range(lo, hi, 2):
            a = acc[n & 1]
            if first and n < 2:
                ops.append(I(f"v_max_f32 v{a}, v{r}, v{r + 1}"))
            else:
                ops.append(I(f"v_max3_f32 v{a}, v{r}, v{r + 1}, v{a}"))
            n += 1
        return ops

    def g1_publish(self, scale):
        e = self.e
        if scale:
            for x in range(16):
                e(f"v_mul_f32 v{vG1 + x}, v{vRL}, v{vG1 + x}")
        for x in range(8):
            e(f"v_cvt_pk_bf16_f32 v{vCV + x}, v{vG1 + 2 * x}, v{vG1 + 2 * x + 1}")
            if x == 3:
                e(f"ds_write_b128 v{vExOwn}, {rng('v', vCV, 4)} offset:1024")
        e(f"ds_write_b128 v{vExOwn}, {rng('v', vCV + 4, 4)} offset:2048")

    def sync(self, t):
        younger = 4 * (self.issued - 1 - t)
        self.e(f"s_waitcnt vmcnt({younger}) lgkmcnt(0)", "s_barrier")

    def next_dma(self, t):
        g = []
        target = min(len(TILES), t + self.c["lead"] + 1)
        while self.issued < target:
            g += self.dma_groups(self.issued)
            self.issued += 1
        return g

    @staticmethod
    def mix(*lists):
        items = []
        for li, lst in enumerate(lists):
            for k, x in enumerate(lst):
                items.append(((k + 0.5) / len(lst), li, k, x))
        items.sort(key=lambda z: z[:3])
        return [z[3] for z in items]

    def body(self):
        e = self.e
        e("; x fragments")
        self.sync(3)
        self.stamp()
        for g in self.next_dma(3):
            e(*g)
        for k in range(28):
            va, kk = (61, k) if k < 14 else (62, k - 14)
            e(f"ds_read_b128 {rng('a', aX + 4 * k, 4)}, v{va} offset:{32 * kk}")
        for t in range(4, len(TILES)):
            kind, j, i = TILES[t]
            if (kind, i) == ("wq", 0) and j in (1, 2) or (kind, i) == ("v", 0) and j in (0, 1, 2, 3):
                self.stamp()
            self.sync(t)
            dma = self.next_dma(t)
            reads = self.read_groups(t)
            prev = TILES[t - 1][0]
            mf = self.mfmas(t - 1) if prev != "x" and not (kind == "v" and j == 0 and i == 0) else []
            if (kind, i) in (("k", 1), ("wo", 1)):
                for k in range(4):
                    if kind == "k":
                        va, off = vExQ, (k >> 1) * 8192 + 1024 + (k & 1) * 1024
                    else:
                        va, off = (vExOa if k < 2 else vExOb), 1024 + (k & 1) * 1024
                    e(f"ds_read_b128 {rng('a', aB2 + 4 * k, 4)}, v{va} offset:{off}")
                for g in dma:
                    e(*g)
                for g in reads[:4]:
                    e(*g)
                e("s_waitcnt lgkmcnt(4)")
                e(*interleave(mf, reads[4:]))
            elif kind == "v" and j == 0 and i == 0:
                e(f"ds_read_b32 v{vT1}, v{vExPar} offset:16384")
                for g in dma:
                    e(*g)
                e("s_waitcnt lgkmcnt(0)",
                  f"v_max_f32 v{vM}, v{vT0}, v{vT1}",
                  f"v_mul_f32 v{vM}, s{sC}, v{vM}")
                for g in self.mix(reads, self.exp_groups(0)):
                    e(*g)
            elif (kind == "v" and j == 0) or (kind == "wo" and j == 0 and i == 0):
                pi = i - 1 if kind == "v" else 3
                for f in range(4):
                    e(f"ds_read_b128 {rng('a', aPP + 4 * (4 * pi + f), 4)}, v{vExPar} offset:{(pi & 1) * 16384 + f * 1024}")
                if kind == "wo":
                    e(f"ds_read_b32 v{vT1}, v{vExOwn}")
                    e(*interleave(mf[:4], dma))
                    e("s_waitcnt lgkmcnt(0)")
                    extra = [[I(f"v_add_f32 v{vRL}, v{vL0}, v{vT1}")], [I(f"v_rcp_f32 v{vRL}, v{vRL}")]]
                    e(*interleave(mf[4:], extra + reads))
                else:
                    ex = self.exp_groups(i)
                    n0 = 9
                    e(*interleave(mf[:2], self.mix(dma, ex[:n0])))
                    e("s_waitcnt lgkmcnt(0)")
                    e(*interleave(mf[2:], self.mix(reads, ex[n0:])))
                    if i == 3:
                        e(f"v_add_f32 v{vL0}, v{vL0}, v{vL1}",
                          f"v_mov_b32 v{vL1}, v{vL0}",
                          f"v_permlane32_swap_b32 v{vL0}, v{vL1}",
                          f"v_add_f32 v{vL0}, v{vL0}, v{vL1}",
                          f"ds_write_b32 v{vExPar}, v{vL0}")
            else:
                e(*interleave(mf, self.mix(reads, dma) if dma else reads))
            if (kind, i) == ("k", 0):
                self.g1_publish(False)
            if (kind, i) == ("wo", 0):
                self.g1_publish(True)
            if (kind, j, i) == ("k", 3, 3):
                e("; row maximum")
                e("s_waitcnt lgkmcnt(0)")
                mx = self.max_ops(vS, vS + 96, True)
                e(*interleave(self.mfmas(t), [[x] for x in mx]))
                e(*self.max_ops(vS + 96, vS + 128, False))
                e(f"v_max_f32 v{vT0}, v{vT0}, v{vT1}",
                  f"v_mov_b32 v{vT1}, v{vT0}",
                  f"v_permlane32_swap_b32 v{vT0}, v{vT1}",
                  f"v_max_f32 v{vT0}, v{vT0}, v{vT1}",
                  f"ds_write_b32 v{vExOwn}, v{vT0} offset:16384")

        self.stamp()
        e("s_waitcnt lgkmcnt(0)")
        mf = self.mfmas(len(TILES) - 1)
        outg = []
        for n in range(7):
            grp = []
            for hf in range(2):
                u = 2 * n + hf
                d = vP + 4 * u
                for x in range(4):
                    r = vS + 16 * n + 8 * hf + 2 * x
                    grp.append(I(f"v_cvt_pk_bf16_f32 v{d + x}, v{r}, v{r + 1}"))
                if u % 4 == 0:
                    grp.append(I(f"s_mov_b32 s{sSOFF}, {u * 1024}"))
                grp.append(I(f"buffer_store_dwordx4 {rng('v', d, 4)}, v{vSt}, {srd(S_WS)}, s{sSOFF} offen offset:{(u % 4) * 1024} {self.c['aux_st']}"))
            outg.append(grp)
        e(*mf[:3])
        for n in range(7):
            if n + 3 < 7:
                e(mf[n + 3])
            e(*outg[n])
        if self.c["stamps"]:
            self.stamp()
            e("s_waitcnt vmcnt(0)")
            self.stamp()
            e("s_waitcnt lgkmcnt(0)",
              "s_lshl_b32 s6, s2, 2", f"s_add_u32 s6, s6, s{sW}", "s_lshl_b32 s6, s6, 7",
              "s_add_u32 s6, s6, 0x1000000",
              f"s_add_u32 s{S_WS}, s92, s6", f"s_addc_u32 s{S_WS + 1}, s93, 0",
              f"s_mov_b32 s{S_WS + 2}, 128",
              "v_mov_b32 v0, 0")
            regs = [94] + [sSTAMP + 2 * k for k in range(self.nstamp)]
            for k, r in enumerate(regs):
                e(f"v_mov_b32 v2, s{r}", f"v_mov_b32 v3, s{r + 1}",
                  f"buffer_store_dwordx2 v[2:3], v0, {srd(S_WS)}, 0 offen offset:{8 * k}")
        e("L_main_end:", "s_endpgm")

    def reduce_kernel(self):
        e = self.e
        c = self.c
        e("s_cmp_ge_u32 s2, 224", "s_cbranch_scc1 L_red_end")
        e("s_load_dwordx2 s[4:5], s[0:1], 80", "s_load_dwordx2 s[6:7], s[0:1], 96")
        e("v_lshrrev_b32 v1, 6, v0", "v_and_b32 v0, 63, v0", "v_readfirstlane_b32 s16, v1")
        e("s_mul_hi_u32 s17, s2, 0x12492493",
          "s_mul_i32 s18, s17, 14",
          "s_sub_u32 s18, s2, s18",
          "s_lshl_b32 s18, s18, 2",
          "s_add_u32 s18, s18, s16",
          f"s_mul_i32 s19, s17, {16 * 57344}",
          "s_lshl_b32 s20, s18, 10",
          "v_lshl_add_u32 v1, v0, 4, s20",
          "s_waitcnt lgkmcnt(0)",
          "s_add_u32 s8, s6, s19", "s_addc_u32 s9, s7, 0",
          f"s_mov_b32 s10, {16 * 57344}", "s_mov_b32 s11, 0x00020000",
          "s_mov_b32 s21, 0")
        for h in range(16):
            e(f"buffer_load_dwordx4 {rng('v', 16 + 4 * h, 4)}, v1, s[8:11], s21 offen {c['aux_rd']}")
            if h < 15:
                e("s_add_u32 s21, s21, 57344")
        e("s_mov_b32 s12, s4", "s_mov_b32 s13, s5", "s_mov_b32 s14, 917504", "s_mov_b32 s15, 0x00020000")
        e("s_mul_hi_u32 s22, s18, 0x12492493",
          "s_mul_i32 s23, s22, 14",
          "s_sub_u32 s23, s18, s23",
          "s_and_b32 s24, s22, 1",
          "s_lshr_b32 s25, s22, 1",
          "s_and_b32 s26, s17, 7",
          "s_lshr_b32 s27, s17, 3",
          "s_lshl_b32 s26, s26, 6", "s_lshl_b32 s24, s24, 5", "s_add_u32 s26, s26, s24",
          "s_mul_i32 s26, s26, 1792",
          "s_mul_i32 s27, s27, 896", "s_add_u32 s26, s26, s27",
          "s_mul_i32 s25, s25, 448", "s_add_u32 s26, s26, s25",
          "s_lshl_b32 s23, s23, 5", "s_add_u32 s26, s26, s23",
          "v_and_b32 v2, 31, v0", "v_mul_u32_u24 v2, 1792, v2",
          "v_lshrrev_b32 v3, 5, v0", "v_lshl_add_u32 v2, v3, 4, v2",
          "v_add_u32 v2, s26, v2",
          "s_mov_b32 s28, 0x00003f80", "s_mov_b32 s29, 0x3f800000")
        for h in range(16):
            e(f"s_waitcnt vmcnt({15 - h})")
            for x in range(4):
                src = 16 + 4 * h + x
                for hi in range(2):
                    a = 8 + 2 * x + hi
                    e(f"v_dot2_f32_bf16 v{a}, v{src}, s{28 + hi}, {'0' if h == 0 else 'v%d' % a}")
        for x in range(4):
            e(f"v_cvt_pk_bf16_f32 v{4 + x}, v{8 + 2 * x}, v{9 + 2 * x}")
        e("buffer_store_dwordx4 v[4:7], v2, s[12:15], 0 offen")
        e("L_red_end:", "s_endpgm")


HEADER = """; Fused Q-projection / attention / output-projection for both branches, then a cross-head reduce.
; Kernarg: A_x A_k A_v A_wq A_wo B_x B_k B_v B_wq B_wo out debug ws (8-byte pointers).
; @launch kernel={name}_kernel grid=(256,1,1) block=(256,1,1) lds=163840
; @launch kernel=reduce_heads_kernel grid=(224,1,1) block=(256,1,1) lds=0
.amdgcn_target "amdgcn-amd-amdhsa--gfx950"
.text
"""

KD = """.amdhsa_kernel {label}
  .amdhsa_next_free_vgpr {vgpr}
  .amdhsa_next_free_sgpr 102
  .amdhsa_accum_offset {acc}
  .amdhsa_group_segment_fixed_size 0
  .amdhsa_kernarg_size 104
  .amdhsa_user_sgpr_count 2
  .amdhsa_user_sgpr_kernarg_segment_ptr 1
  .amdhsa_system_sgpr_workgroup_id_x 1
  .amdhsa_float_denorm_mode_32 3
.end_amdhsa_kernel
"""


def entry(label):
    return f".globl {label}\n.p2align 8\n.type {label},@function\n{label}:\n"


def build(cfg):
    g = Gen(cfg)
    g.prologue()
    g.body()
    main = render(pad_hazards(g.o))
    r = Gen(cfg)
    r.reduce_kernel()
    red = render(pad_hazards(r.o))
    s = HEADER.format(name=NAME)
    s += entry(NAME + "_kernel") + main
    s += entry("reduce_heads_kernel") + red
    s += '.section .rodata,"a"\n.p2align 6\n'
    s += KD.format(label=NAME + "_kernel", vgpr=448, acc=256)
    s += ".p2align 6\n" + KD.format(label="reduce_heads_kernel", vgpr=80, acc=80)
    return s


if __name__ == "__main__":
    ap = argparse.ArgumentParser()
    ap.add_argument("-o", default="cdna_kernels/" + NAME + ".s")
    ap.add_argument("opts", nargs="*")
    a = ap.parse_args()
    cfg = dict(DEFAULTS)
    for o in a.opts:
        k, v = o.split("=", 1)
        assert k in cfg, k
        cfg[k] = type(cfg[k])(v.replace("+", " "))
    open(a.o, "w").write(build(cfg))
    print("wrote", a.o, json.dumps(cfg), file=sys.stderr)
```

```python
import sys
from asmdsl import I, pad_hazards, render
def spin_kernel(k, mode, lo=0, hi=4):
    L = ["s_cmp_ge_u32 s2, 1", "s_cbranch_scc1 L_diag_end",
         "s_load_dwordx2 s[4:5], s[0:1], 96", "v_lshlrev_b32 v1, 9, v0", "s_waitcnt lgkmcnt(0)",
         "s_add_u32 s8, s4, 0x1000000", "s_addc_u32 s9, s5, 0", "s_mov_b32 s10, 131072", "s_mov_b32 s11, 0x00020000"]
    for q in range(4):
        L += [f"s_mov_b32 s12, {q * 32768}",
              f"buffer_load_dword v{2 + q}, v1, s[8:11], s12 offen sc1",
              f"buffer_load_dword v{6 + q}, v1, s[8:11], s12 offen offset:{8 * k} sc1"]
    L += ["s_waitcnt vmcnt(0)", "v_min_u32 v2, v2, v3", "v_min_u32 v4, v4, v5", "v_min_u32 v2, v2, v4"]
    op = "min" if mode == "min" else "max"
    L += [f"v_mov_b32 v10, v{6 + lo}"] + [f"v_{op}_u32 v10, v10, v{6 + q}" for q in range(lo + 1, hi)]
    L += ["v_readlane_b32 s14, v2, 0", "v_readlane_b32 s15, v10, 0"]
    for l in range(1, 64):
        L += [f"v_readlane_b32 s16, v2, {l}", f"v_readlane_b32 s17, v10, {l}", "s_min_u32 s14, s14, s16", f"s_{op}_u32 s15, s15, s17"]
    L += ["s_sub_u32 s14, s15, s14", "s_min_u32 s14, s14, 8000", "s_mul_i32 s14, s14, 10"]
    if mode == "zero":
        L += ["s_mov_b32 s14, 0"]
    L += ["s_memrealtime s[18:19]", "s_waitcnt lgkmcnt(0)", "L_diag_loop:", "s_memrealtime s[20:21]", "s_waitcnt lgkmcnt(0)",
          "s_sub_u32 s22, s20, s18", "s_cmp_lt_u32 s22, s14", "s_cbranch_scc1 L_diag_loop", "L_diag_end:", "s_endpgm"]
    return render(pad_hazards([I(x) for x in L]))
KD = """.p2align 6
.amdhsa_kernel diag_kernel
  .amdhsa_next_free_vgpr 16
  .amdhsa_next_free_sgpr 32
  .amdhsa_accum_offset 16
  .amdhsa_group_segment_fixed_size 0
  .amdhsa_kernarg_size 104
  .amdhsa_user_sgpr_count 2
  .amdhsa_user_sgpr_kernarg_segment_ptr 1
  .amdhsa_system_sgpr_workgroup_id_x 1
.end_amdhsa_kernel
"""
def add(src, dst, k, mode, lo=0, hi=4):
    s = open(src).read()
    lines = s.split("\n")
    last = max(i for i, l in enumerate(lines[:12]) if l.startswith("; @launch"))
    if "kernel=" not in lines[last]:
        N = "concat_heads__gqa_block_cached__mha_block_cached__near_ridge_kernel"
        lines[last] = lines[last].replace("; @launch ", f"; @launch kernel={N} ")
    lines.insert(last + 1, "; @launch kernel=diag_kernel grid=(1,1,1) block=(64,1,1) lds=0")
    s = "\n".join(lines)
    body = ".globl diag_kernel\n.p2align 8\n.type diag_kernel,@function\ndiag_kernel:\n" + spin_kernel(k, mode, lo, hi)
    s = s.replace('.section .rodata,"a"', body + '.section .rodata,"a"') + KD
    open(dst, "w").write(s)
if __name__ == "__main__":
    add(sys.argv[1], sys.argv[2], int(sys.argv[3]), sys.argv[4], *[int(x) for x in sys.argv[5:]])
```

```python
import argparse
import json
import math
import struct
import sys

from asmdsl import I, interleave, pad_hazards, render, rng

NAME = "concat_heads__gqa_block_cached__mha_block_cached__near_ridge"

DEFAULTS = dict(
    lead=4,
    leads="",
    aux_x="", aux_w="", aux_kv="nt", aux_st="sc1", aux_rd="sc1",
    aux_kva="same",
    rot=1, wsw=1, psw=0, xsw=0,
    fused=1,
    sleep=1,
    stamps=0,
)

EX = 131072
OOB = 0x80000000
FLAGS = 0xE00000
SPIN_MAX = 65536

S_X, S_K, S_V, S_WQ, S_WO, S_WS, S_FL = 8, 12, 16, 20, 24, 28, 32
S_DBG = S_X
sW, sQB, sS, sBR, sB, sH, sWSW, sT0, sT1, sT2, sSOFF, sM4096, sC, sXSW = range(58, 72)
sKI, sSL, sWQI, sWOI, sWOJ = 72, 76, 80, 84, 88
sOUT, sDBGP, sWSP = 92, 94, 56
sSTAMP = 36

vWqD, vKD, vVD, vWoD = 1, 5, 7, 8
vWqR, vKR, vVRo, vVRp, vWoR = 12, 13, 17, 18, 19
vExOwn, vExPar, vExQ, vExOa, vExOb, vSt = 26, 27, 28, 29, 30, 31
vL, vM, vRdy, vRL, vLead, vT2, vT3 = 32, 34, 35, 36, 37, 38, 39
vCV, vG1, vP, vS = 40, 48, 64, 128
vMC, vT0, vT1 = 40, 46, 47
aX, aPP, aB2, aF = 0, 0, 112, 128


def srd(n):
    return f"s[{n}:{n + 3}]"


def pair(n):
    return f"v[{n}:{n + 1}]"


def tile_list():
    t = [("x", 0, i) for i in range(4)]
    for j in range(4):
        t += [("wq", j, i) for i in range(4)] + [("k", j, i) for i in range(4)]
    for j in range(4):
        t += [("v", j, i) for i in range(4)] + [("wo", j, i) for i in range(4)]
    return t


TILES = tile_list()


class Gen:
    def __init__(self, cfg):
        self.c = cfg
        self.o = []
        self.issued = 0
        self.nstamp = 0
        self.vm = []
        self.sfx = ""
        self.kv_aux = cfg["aux_kv"]
        self.leads = dict(tuple(int(x) for x in p.split(":")) for p in cfg["leads"].split("/") if p)

    def e(self, *lines):
        for ln in lines:
            ins = I(ln) if isinstance(ln, str) else ln
            if ins.kind == "vmem":
                self.vm.append(getattr(ins, "tag", None))
            self.o.append(ins)

    def stamp(self):
        if self.c["stamps"] and self.nstamp < 10:
            r = sSTAMP + 2 * self.nstamp
            self.e(f"s_memrealtime s[{r}:{r + 1}]")
            self.nstamp += 1

    def make_srd(self, dst, pa, pb, off, nrec):
        self.e(f"s_cmp_eq_u32 s{sBR}, 0",
               f"s_cselect_b32 s{dst}, s{pa}, s{pb}",
               f"s_cselect_b32 s{dst + 1}, s{pa + 1}, s{pb + 1}",
               f"s_add_u32 s{dst}, s{dst}, s{off}",
               f"s_addc_u32 s{dst + 1}, s{dst + 1}, 0",
               f"s_mov_b32 s{dst + 2}, {nrec}",
               f"s_mov_b32 s{dst + 3}, 0x00020000")

    def prologue(self):
        c = self.c
        e = self.e
        e("s_cmp_ge_u32 s2, 256", "s_cbranch_scc1 L_main_end")
        e("s_load_dwordx16 s[36:51], s[0:1], 0",
          "s_load_dwordx4 s[52:55], s[0:1], 64",
          f"s_load_dwordx4 s[{sOUT}:{sOUT + 3}], s[0:1], 80",
          f"s_load_dwordx2 s[{sWSP}:{sWSP + 1}], s[0:1], 96")
        if c["stamps"]:
            e("s_memrealtime s[98:99]", "s_memtime s[100:101]")
        e("v_lshrrev_b32 v40, 6, v0", "v_and_b32 v0, 63, v0", f"v_readfirstlane_b32 s{sW}, v40")
        e("s_and_b32 s3, s2, 7",
          "s_lshr_b32 s4, s2, 3",
          f"s_lshr_b32 s{sBR}, s4, 4",
          f"s_bfe_u32 s{sB}, s4, 0x30001",
          "s_and_b32 s5, s4, 1",
          f"s_lshl_b32 s{sH}, s3, 1",
          f"s_add_u32 s{sH}, s{sH}, s5",
          f"s_and_b32 s{sQB}, s{sW}, 1",
          f"s_lshr_b32 s{sS}, s{sW}, 1",
          f"s_lshl_b32 s{sM4096}, s{sW}, 12")
        if c["xsw"]:
            e(f"s_lshl_b32 s{sXSW}, s5, 1")
        else:
            e(f"s_mov_b32 s{sXSW}, 0")
        if c["wsw"]:
            e(f"s_lshr_b32 s{sWSW}, s{sB}, 2", f"s_lshl_b32 s{sWSW}, s{sWSW}, 1")
        else:
            e(f"s_mov_b32 s{sWSW}, 0")
        e(f"s_mul_i32 s{sT0}, s{sW}, {4 * 896}",
          f"v_lshl_add_u32 v41, v0, 4, s{sT0}",
          f"s_mul_i32 s{sT1}, s{sB}, 57344",
          f"s_mul_i32 s{sT2}, s{sW}, {4 * 912}")
        e("v_lshrrev_b32 v42, 3, v0",
          "v_and_b32 v43, 7, v0",
          "v_bfe_u32 v44, v0, 4, 1",
          "v_lshlrev_b32 v44, 2, v44",
          "v_xor_b32 v44, v44, v43",
          "v_lshlrev_b32 v44, 4, v44",
          f"s_lshl_b32 s6, s{sW}, 18",
          "v_lshl_add_u32 v45, v42, 13, s6",
          f"v_add_u32 v{vWqD}, v45, v44",
          f"v_add_u32 v{vWqD + 1}, {65536 - 1024}, v{vWqD}",
          f"s_cmp_eq_u32 s{sW}, 3",
          f"s_cselect_b32 s6, 0x{OOB:x}, 0",
          f"s_add_u32 s7, s6, {2 * (65536 - 1024)}",
          f"v_add_u32 v{vWqD + 2}, s7, v{vWqD}",
          f"s_add_u32 s7, s6, {3 * (65536 - 1024)}",
          f"v_add_u32 v{vWqD + 3}, s7, v{vWqD}")
        e("s_waitcnt lgkmcnt(0)")
        self.make_srd(S_X, 36, 46, sT1, 57344)
        e("s_mov_b32 exec_hi, 0x00ffffff")
        for i in range(4):
            e(f"s_xor_b32 s6, s{sXSW}, {i}",
              f"s_mul_i32 s{sSOFF}, s6, {16 * 896}",
              "s_lshl_b32 s6, s6, 14",
              f"s_add_u32 s6, s6, s{sT2}")
            for u in range(4):
                ld = I(f"buffer_load_dwordx4 v41, {srd(S_X)}, s{sSOFF} offen offset:{896 * u} {c['aux_x']} lds")
                ld.tag = i
                e(f"s_add_u32 m0, s6, {16 * u}", ld)
        e("s_mov_b32 exec_hi, -1")
        self.issued = 4
        e(f"s_lshl_b32 s{sT0}, s{sH}, 9")
        self.make_srd(S_WQ, 42, 52, sT0, 0)
        e(f"s_sub_u32 s{S_WQ + 2}, 3670016, s{sT0}")
        for j in range(4):
            if c["rot"]:
                e(f"s_add_u32 s6, s{sB}, {j}", "s_and_b32 s6, s6, 3")
            else:
                e(f"s_mov_b32 s6, {j}")
            e(f"s_lshl_b32 s{sSL + j}, s6, 7", f"s_mul_i32 s{sWOJ + j}, s6, {64 * 896}")
        if c["psw"]:
            e(f"s_cmp_eq_u32 s{sBR}, 0", "s_cselect_b32 s7, s5, 0", "s_lshl_b32 s7, s7, 1")
        else:
            e("s_mov_b32 s7, 0")
        for i in range(4):
            e(f"s_xor_b32 s6, s7, {i}", f"s_lshl_b32 s{sKI + i}, s6, 16",
              f"s_xor_b32 s6, s{sWSW}, {i}",
              f"s_mul_i32 s{sWQI + i}, s6, {112 * 8192}",
              f"s_mul_i32 s{sWOI + i}, s6, {16 * 896}")
        first = min(8, 3 + c["lead"])
        while self.issued < first:
            for g in self.dma_groups(self.issued):
                e(*g)
            self.issued += 1
        e(f"s_lshl_b32 s6, s{sB}, 4", f"s_add_u32 s6, s6, s{sH}",
          f"s_lshl_b32 s7, s{sB}, 3", "s_add_u32 s7, s7, s3",
          f"s_cmp_eq_u32 s{sBR}, 0", "s_cselect_b32 s6, s7, s6",
          f"s_lshl_b32 s{sT0}, s6, 18")
        self.make_srd(S_K, 38, 48, sT0, 262144)
        self.make_srd(S_V, 40, 50, sT0, 262144)
        e(f"s_mul_i32 s{sT0}, s{sH}, 229376")
        self.make_srd(S_WO, 44, 54, sT0, 229376)
        e(f"s_lshl_b32 s{sT1}, s{sBR}, 3", f"s_add_u32 s{sT1}, s{sT1}, s{sB}", f"s_lshl_b32 s6, s{sT1}, 4",
          f"s_add_u32 s6, s6, s{sH}", f"s_mul_i32 s{sT0}, s6, 57344",
          f"s_add_u32 s{S_WS}, s{sWSP}, s{sT0}", f"s_addc_u32 s{S_WS + 1}, s{sWSP + 1}, 0",
          f"s_mov_b32 s{S_WS + 2}, 57344", f"s_mov_b32 s{S_WS + 3}, 0x00020000")
        if c["stamps"]:
            e(f"s_mov_b32 s{sSTAMP}, s98", f"s_mov_b32 s{sSTAMP + 1}, s99")
            self.nstamp = 1
        if c["fused"]:
            e(f"s_lshl_b32 s6, s{sT1}, 12", f"s_add_u32 s6, s6, 0x{FLAGS:x}",
              f"s_add_u32 s{S_FL}, s{sWSP}, s6", f"s_addc_u32 s{S_FL + 1}, s{sWSP + 1}, 0",
              f"s_mov_b32 s{S_FL + 2}, 64", f"s_mov_b32 s{S_FL + 3}, 0x00020000",
              f"s_lshl_b32 s6, s{sT1}, 2",
              f"s_add_u32 s{S_DBG}, s{sDBGP}, s6", f"s_addc_u32 s{S_DBG + 1}, s{sDBGP + 1}, 0",
              f"s_mov_b32 s{S_DBG + 2}, 4",
              f"s_or_b32 s6, s{sH}, s{sW}", "s_cmp_eq_u32 s6, 0",
              f"s_cselect_b32 s6, 0, 0x{OOB:x}",
              f"v_lshl_add_u32 v{vLead}, v0, 2, s6",
              f"v_mov_b32 v{vRdy}, 0",
              f"buffer_store_dword v{vRdy}, v{vLead}, {srd(S_FL)}, 0 offen sc1")
        cbits = struct.unpack("<I", struct.pack("<f", math.log2(math.e) / 16.0))[0]
        e(f"s_mov_b32 s{sC}, 0x{cbits:08x}", f"s_mov_b32 s{sC + 1}, 0x{cbits:08x}")
        e("v_and_b32 v45, 1, v42",
          "v_lshrrev_b32 v46, 1, v42",
          "v_lshl_add_u32 v45, v46, 3, v45",
          f"s_lshl_b32 s6, s{sW}, 14",
          "v_lshl_add_u32 v45, v45, 9, s6",
          f"v_add_u32 v{vVD}, v45, v44",
          "v_xor_b32 v46, v46, v43",
          f"v_lshl_add_u32 v{vKD}, v46, 4, v45",
          f"v_xor_b32 v{vKD + 1}, 64, v{vKD}")
        e("v_lshrrev_b32 v45, 2, v0", "v_and_b32 v46, 3, v0", "v_lshlrev_b32 v47, 4, v46",
          f"v_mov_b32 v48, 0x{OOB:x}")
        for u in range(4):
            e(f"s_mul_i32 s6, s{sW}, {4 * 896}", f"s_add_u32 s6, s6, {896 * u}",
              f"v_xor_b32 v49, {u}, v45",
              "v_cmp_gt_u32 vcc, 14, v49",
              "v_lshl_add_u32 v49, v49, 6, v47",
              "v_add_u32 v49, s6, v49",
              f"v_cndmask_b32 v{vWoD + u}, v48, v49, vcc")
        e("v_and_b32 v50, 31, v0",
          "v_lshrrev_b32 v51, 5, v0",
          "v_bfe_u32 v52, v0, 4, 1",
          "v_bfe_u32 v53, v0, 2, 2",
          "v_and_b32 v54, 1, v0",
          "v_lshlrev_b32 v54, 1, v54",
          "v_bfe_u32 v55, v0, 1, 1",
          "v_or_b32 v54, v54, v55",
          "v_lshl_add_u32 v54, v52, 2, v54",
          "v_lshlrev_b32 v54, 3, v54",
          "v_lshl_add_u32 v55, v52, 2, v46",
          "v_lshlrev_b32 v55, 3, v55",
          "v_lshrrev_b32 v56, 1, v53",
          f"v_xor_b32 v56, s{sS}, v56",
          "v_lshlrev_b32 v56, 6, v56",
          "v_lshl_add_u32 v57, v51, 3, v53",
          "v_lshl_add_u32 v57, v57, 7, v56",
          "v_add_u32 v57, v57, v54",
          f"v_add_u32 v{vWqR}, 0x10000, v57",
          "v_lshl_add_u32 v58, v51, 2, v53",
          "v_lshl_add_u32 v57, v58, 7, v56",
          "v_add_u32 v57, v57, v55",
          f"s_lshl_b32 s6, s{sS}, 13", "s_add_u32 s7, s6, 0x10000",
          f"v_add_u32 v{vVRo}, s7, v57",
          f"v_xor_b32 v{vVRp}, 0x2000, v{vVRo}",
          "v_lshl_add_u32 v57, v50, 7, s6",
          "v_bfe_u32 v59, v0, 1, 3",
          "v_xor_b32 v59, v59, v51")
        for k in range(4):
            e(f"v_xor_b32 v60, {2 * k}, v59", f"v_lshl_add_u32 v{vKR + k}, v60, 4, v57")
        e("v_lshl_add_u32 v57, v58, 10, v54", f"s_mul_i32 s6, s{sS}, 7")
        for n in range(7):
            e(f"s_add_u32 s7, s6, {n}", "v_xor_b32 v60, s7, v53",
              f"v_lshl_add_u32 v{vWoR + n}, v60, 6, v57")
        e(f"s_add_u32 s6, s{sM4096}, {EX}",
          f"v_lshl_add_u32 v{vExOwn}, v0, 4, s6",
          f"v_xor_b32 v{vExPar}, 0x2000, v{vExOwn}",
          f"s_lshl_b32 s6, s{sQB}, 12", f"s_add_u32 s6, s6, {EX}",
          f"v_lshl_add_u32 v{vExQ}, v0, 4, s6",
          f"s_lshl_b32 s7, s{sWSW}, 12",
          f"v_add_u32 v{vExOa}, s7, v{vExQ}",
          f"v_xor_b32 v{vExOb}, 0x2000, v{vExOa}",
          f"s_mul_i32 s6, s{sW}, 14336",
          f"v_lshl_add_u32 v{vSt}, v0, 4, s6")
        e("v_lshrrev_b32 v57, 4, v50", f"s_lshl_b32 s6, s{sQB}, 15",
          "v_lshl_add_u32 v57, v57, 14, s6",
          "v_and_b32 v60, 15, v0",
          "v_mul_u32_u24 v60, 912, v60",
          "v_add_u32 v57, v57, v60",
          "v_lshl_add_u32 v57, v51, 4, v57",
          f"s_mul_i32 s6, s{sWSW}, 224",
          "v_add_u32 v61, s6, v57",
          "s_sub_u32 s6, 448, s6",
          "v_add_u32 v62, s6, v57")

    def dma_groups(self, t):
        c = self.c
        kind, j, i = TILES[t]
        slot = (t % 8) * 16384
        g = []
        if kind in ("k", "v"):
            head = [f"s_add_u32 s{sSOFF}, s{sKI + i}, s{sSL + j}", f"s_add_u32 m0, s{sM4096}, {slot}"]
            for u in range(4):
                vo = vKD + (u & 1) if kind == "k" else vVD
                s = S_K if kind == "k" else S_V
                ld = f"buffer_load_dwordx4 v{vo}, {srd(s)}, s{sSOFF} offen offset:{1024 * u} {self.kv_aux} lds"
                g.append([I(x) for x in (head[::-1] if u == 0 else []) + [ld]])
        elif kind == "wq":
            head = [f"s_add_u32 m0, s{sM4096}, {slot}", f"s_add_u32 s{sSOFF}, s{sWQI + i}, s{sSL + j}"]
            for u in range(4):
                ld = f"buffer_load_dwordx4 v{vWqD + u}, {srd(S_WQ)}, s{sSOFF} offen offset:{1024 * u} {c['aux_w']} lds"
                g.append([I(x) for x in (head if u == 0 else []) + [ld]])
        elif kind == "wo":
            for u in range(4):
                head = [f"s_add_u32 m0, s{sM4096}, {slot + 1024 * u}"]
                if u == 0:
                    head.append(f"s_add_u32 s{sSOFF}, s{sWOI + i}, s{sWOJ + j}")
                ld = f"buffer_load_dwordx4 v{vWoD + u}, {srd(S_WO)}, s{sSOFF} offen {c['aux_w']} lds"
                g.append([I(x) for x in head + [ld]])
        for grp in g:
            grp[-1].tag = t
        return g

    def frag(self, t, n):
        return aF + 32 * (t & 1) + 4 * n

    def read_groups(self, t):
        kind, j, i = TILES[t]
        base = i * 16384
        g = []
        if kind == "wq":
            for k in range(7):
                f = self.frag(t, k)
                for h in range(2):
                    g.append([I(f"ds_read_b64_tr_b16 {rng('a', f + 2 * h, 2)}, v{vWqR} offset:{base + k * 2048 + h * 512}")])
        elif kind == "k":
            for u2 in range(2):
                for k in range(4):
                    f = self.frag(t, 4 * u2 + k)
                    g.append([I(f"ds_read_b128 {rng('a', f, 4)}, v{vKR + k} offset:{base + u2 * 4096}")])
        elif kind == "v":
            for pp in range(8):
                f = self.frag(t, pp)
                va = vVRo if pp < 4 else vVRp
                for h in range(2):
                    g.append([I(f"ds_read_b64_tr_b16 {rng('a', f + 2 * h, 2)}, v{va} offset:{base + (pp & 3) * 2048 + h * 1024}")])
        elif kind == "wo":
            for n in range(7):
                f = self.frag(t, n)
                for h in range(2):
                    g.append([I(f"ds_read_b64_tr_b16 {rng('a', f + 2 * h, 2)}, v{vWoR + n} offset:{base + h * 8192}")])
        return g

    def mfmas(self, t):
        kind, j, i = TILES[t]
        m = []

        def mf(d, a, b, zero):
            dd = rng('v', d, 16)
            m.append(I(f"v_mfma_f32_32x32x16_bf16 {dd}, {rng('a', a, 4)}, {b}, {'0' if zero else dd}"))
        if kind == "wq":
            for k in range(7):
                mf(vG1, self.frag(t, k), rng('a', aX + 4 * (7 * i + k), 4), i == 0 and k == 0)
        elif kind == "k":
            for k in range(4):
                for u2 in range(2):
                    mf(vS + 16 * (2 * i + u2), self.frag(t, 4 * u2 + k), rng('a', aB2 + 4 * k, 4), j == 0 and k == 0)
        elif kind == "v":
            for pp in range(8):
                b = rng('v', vP + 4 * (4 * i + pp), 4) if pp < 4 else rng('a', aPP + 4 * (4 * i + pp - 4), 4)
                mf(vG1, self.frag(t, pp), b, i == 0 and pp == 0)
        elif kind == "wo":
            for n in range(7):
                mf(vS + 16 * n, self.frag(t, n), rng('a', aB2 + 4 * i, 4), j == 0 and i == 0)
        return m

    def max_ops(self, i, acc):
        ops = []
        for n, r in enumerate(range(vS + 32 * i, vS + 32 * i + 32, 2)):
            a = acc[n & 1]
            if n < 2:
                ops.append(I(f"v_max_f32 v{a}, v{r}, v{r + 1}"))
            else:
                ops.append(I(f"v_max3_f32 v{a}, v{r}, v{r + 1}, v{a}"))
        ops.append(I(f"v_max_f32 v{acc[0]}, v{acc[0]}, v{acc[1]}"))
        ops.append(I(f"v_mul_f32 v{acc[0]}, s{sC}, v{acc[0]}"))
        return ops

    def exp_ops(self, i, m, lo=0, hi=8):
        g = []
        for q in range(lo, hi):
            r = vS + 32 * i + 4 * q
            g.append([I(f"v_pk_fma_f32 {pair(r + x)}, {pair(r + x)}, s[{sC}:{sC + 1}], {pair(m)} "
                        "op_sel_hi:[1,1,0] neg_lo:[0,0,1] neg_hi:[0,0,1]") for x in (0, 2)])
            g.append([I(f"v_exp_f32 v{r + x}, v{r + x}") for x in range(2)])
            g.append([I(f"v_exp_f32 v{r + x}, v{r + x}") for x in range(2, 4)])
        return g

    def early_exp(self, i):
        m = vMC + 2 * i
        return [[x] for x in self.max_ops(i, [m, m + 1])] + self.exp_ops(i, m)

    def pack_groups(self, i):
        g = []
        for q in range(8):
            r = vS + 32 * i + 4 * q
            if i < 3:
                g.append([I(f"v_pk_mul_f32 {pair(r + x)}, {pair(r + x)}, {pair(vMC + 2 * i)} op_sel_hi:[1,0]") for x in (0, 2)])
            p = vP + 16 * i + 2 * q
            if i == 0 and q == 0:
                g.append([I(f"v_pk_add_f32 {pair(vL)}, {pair(r)}, {pair(r + 2)}"),
                          I(f"v_cvt_pk_bf16_f32 v{p}, v{r}, v{r + 1}"),
                          I(f"v_cvt_pk_bf16_f32 v{p + 1}, v{r + 2}, v{r + 3}")])
            else:
                g.append([I(f"v_pk_add_f32 {pair(vL)}, {pair(vL)}, {pair(r)}"),
                          I(f"v_cvt_pk_bf16_f32 v{p}, v{r}, v{r + 1}")])
                g.append([I(f"v_pk_add_f32 {pair(vL)}, {pair(vL)}, {pair(r + 2)}"),
                          I(f"v_cvt_pk_bf16_f32 v{p + 1}, v{r + 2}, v{r + 3}")])
            if q & 1:
                f = q >> 1
                g.append([I(f"ds_write_b128 v{vExOwn}, {rng('v', vP + 16 * i + 4 * f, 4)} offset:{(i & 1) * 16384 + f * 1024}")])
        return g

    def g1_publish(self, scale):
        e = self.e
        for x in range(8):
            r = vG1 + 2 * x
            if scale:
                e(f"v_pk_mul_f32 {pair(r)}, {pair(r)}, {pair(vRL)} op_sel_hi:[1,0]")
        for x in range(8):
            e(f"v_cvt_pk_bf16_f32 v{vCV + x}, v{vG1 + 2 * x}, v{vG1 + 2 * x + 1}")
            if x == 3:
                e(f"ds_write_b128 v{vExOwn}, {rng('v', vCV, 4)} offset:1024")
        e(f"ds_write_b128 v{vExOwn}, {rng('v', vCV + 4, 4)} offset:2048")

    def younger(self, tag):
        last = max(k for k, x in enumerate(self.vm) if x == tag)
        return len(self.vm) - 1 - last

    def sync(self, t, slot=None):
        slot = t - 4 if slot is None else slot
        fine = self.c["stamps"] == 2 and slot >= 0
        if fine:
            self.e("s_memtime s[96:97]")
        self.e(f"s_waitcnt vmcnt({self.younger(t)}) lgkmcnt(0)")
        if fine:
            self.e(f"v_writelane_b32 v{vT2}, s96, {slot}")
            if slot > 0:
                self.e(f"v_writelane_b32 v{vT3}, s98, {slot - 1}")
        self.e("s_barrier")
        if fine:
            self.e("s_memtime s[98:99]")

    def next_dma(self, t):
        g = []
        lead = self.leads.get(t, self.c["lead"])
        assert lead <= 7
        target = min(len(TILES), t + lead + 1)
        if t == 3:
            target = min(target, 8)
        if t == 63:
            target = len(TILES)
        while self.issued < target:
            g += self.dma_groups(self.issued)
            self.issued += 1
        return g

    @staticmethod
    def mix(*lists):
        items = []
        for li, lst in enumerate(lists):
            for k, x in enumerate(lst):
                items.append(((k + 0.5) / len(lst), li, k, x))
        items.sort(key=lambda z: z[:3])
        return [z[3] for z in items]

    def b2_reads(self, kind):
        for k in range(4):
            if kind == "k":
                va, off = vExQ, (k >> 1) * 8192 + 1024 + (k & 1) * 1024
            else:
                va, off = (vExOa if k < 2 else vExOb), 1024 + (k & 1) * 1024
            self.e(f"ds_read_b128 {rng('a', aB2 + 4 * k, 4)}, v{va} offset:{off}")

    def body(self):
        e = self.e
        c = self.c
        e("; x fragments")
        self.sync(3)
        self.stamp()
        for g in self.next_dma(3):
            e(*g)
        for k in range(28):
            va, kk = (61, k) if k < 14 else (62, k - 14)
            e(f"ds_read_b128 {rng('a', aX + 4 * k, 4)}, v{va} offset:{32 * kk}")
        for t in range(4, 64):
            kind, j, i = TILES[t]
            if t in (12, 36, 44, 60):
                self.stamp()
            self.sync(t)
            dma = self.next_dma(t)
            if c["fused"] and t == 12:
                dma.insert(0, [I(f"v_mov_b32 v{vRdy}, 1"),
                               I(f"buffer_store_dword v{vRdy}, v{vLead}, {srd(S_DBG)}, 0 offen sc1")])
            if c["fused"] and t == 52:
                dma.insert(0, [I(f"buffer_load_dword v{vRdy}, off, {srd(S_DBG)}, 0 sc1")])
            reads = self.read_groups(t)
            prev = TILES[t - 1][0]
            mf = self.mfmas(t - 1) if prev != "x" and t != 36 else []
            if (kind, i) in (("k", 1), ("wo", 1)):
                self.b2_reads(kind)
                for g in dma:
                    e(*g)
                for g in reads[:4]:
                    e(*g)
                e("s_waitcnt lgkmcnt(4)")
                e(*interleave(mf, reads[4:]))
            elif t == 36:
                e(f"ds_read_b32 v{vT1}, v{vExPar} offset:16384")
                for g in dma:
                    e(*g)
                e("s_waitcnt lgkmcnt(0)",
                  f"v_max_f32 v{vM}, v{vT0}, v{vT1}")
                for x in range(3):
                    e(f"v_sub_f32 v{vMC + 2 * x}, v{vMC + 2 * x}, v{vM}")
                for x in range(3):
                    e(f"v_exp_f32 v{vMC + 2 * x}, v{vMC + 2 * x}")
                for g in self.mix(reads, self.exp_ops(3, vM, 0, 4) + self.pack_groups(0)):
                    e(*g)
            elif t in (37, 38, 39, 40):
                pi = t - 37
                for f in range(4):
                    e(f"ds_read_b128 {rng('a', aPP + 4 * (4 * pi + f), 4)}, v{vExPar} offset:{(pi & 1) * 16384 + f * 1024}")
                if t == 40:
                    e(f"ds_read_b32 v{vT1}, v{vExOwn}")
                    e(*interleave(mf[:4], dma))
                    e("s_waitcnt lgkmcnt(0)")
                    extra = [[I(f"v_add_f32 v{vRL}, v{vL}, v{vT1}")], [I(f"v_rcp_f32 v{vRL}, v{vRL}")]]
                    e(*interleave(mf[4:], extra + reads))
                else:
                    ex = (self.exp_ops(3, vM, 2 * i + 2, 2 * i + 4) if i < 3 else []) + self.pack_groups(i)
                    n0 = 4
                    e(*interleave(mf[:2], self.mix(dma, ex[:n0]) if dma else ex[:n0]))
                    e("s_waitcnt lgkmcnt(0)")
                    e(*interleave(mf[2:], self.mix(reads, ex[n0:])))
                    if i == 3:
                        e(f"v_add_f32 v{vL}, v{vL}, v{vL + 1}",
                          f"v_mov_b32 v{vL + 1}, v{vL}",
                          f"v_permlane32_swap_b32 v{vL}, v{vL + 1}",
                          f"v_add_f32 v{vL}, v{vL}, v{vL + 1}",
                          f"ds_write_b32 v{vExPar}, v{vL}")
            else:
                e(*interleave(mf, self.mix(reads, dma) if dma else reads))
            if (kind, i) == ("k", 0):
                self.g1_publish(False)
            if (kind, i) == ("wo", 0):
                self.g1_publish(True)
            if t in (33, 34):
                e("; exponentials against the lane-local maximum")
                for g in self.early_exp(t - 33):
                    e(*g)
            if t == 35:
                e("; last score tile and row maximum")
                e("s_waitcnt lgkmcnt(0)")
                mf = self.mfmas(t)
                e(*mf[:2])
                e(*interleave(mf[2:], self.early_exp(2)))
                e(*self.max_ops(3, [vT0, vT1]))
                e(f"v_max3_f32 v{vT0}, v{vT0}, v{vMC}, v{vMC + 2}",
                  f"v_max_f32 v{vT0}, v{vT0}, v{vMC + 4}",
                  f"v_mov_b32 v{vT1}, v{vT0}",
                  f"v_permlane32_swap_b32 v{vT0}, v{vT1}",
                  f"v_max_f32 v{vT0}, v{vT0}, v{vT1}",
                  f"ds_write_b32 v{vExOwn}, v{vT0} offset:16384")
        self.last_slice()
        if c["fused"]:
            self.fused_reduce()
        self.finish()

    def last_slice(self):
        e = self.e
        e("s_waitcnt lgkmcnt(0)")
        e(*self.mfmas(63))
        self.g1_publish(True)
        self.sync(67, 60)
        self.stamp()
        self.b2_reads("wo")

        def reads(n):
            g = []
            for k in range(4):
                f = aF + 16 * (n % 3) + 4 * k
                for h in range(2):
                    g.append([I(f"ds_read_b64_tr_b16 {rng('a', f + 2 * h, 2)}, v{vWoR + n} offset:{k * 16384 + h * 8192}")])
            return g

        def stores(n):
            g = []
            for hf in range(2):
                u = 2 * n + hf
                d = vP + 4 * u
                cv = [I(f"v_cvt_pk_bf16_f32 v{d + x}, v{vS + 16 * n + 8 * hf + 2 * x}, v{vS + 16 * n + 8 * hf + 2 * x + 1}") for x in range(4)]
                g.append(cv[:2])
                grp = cv[2:]
                if u % 4 == 0:
                    grp.append(I(f"s_mov_b32 s{sSOFF}, {u * 1024}"))
                grp.append(I(f"buffer_store_dwordx4 {rng('v', d, 4)}, v{vSt}, {srd(S_WS)}, s{sSOFF} offen offset:{(u % 4) * 1024} {self.c['aux_st']}"))
                g.append(grp)
            return g

        for g in reads(0):
            e(*g)
        for n in range(7):
            nxt = reads(n + 1) if n < 6 else []
            for g in nxt[:2]:
                e(*g)
            e(f"s_waitcnt lgkmcnt({len(nxt[:2])})")
            dd = rng('v', vS + 16 * n, 16)
            mf = [I(f"v_mfma_f32_32x32x16_bf16 {dd}, {rng('a', aF + 16 * (n % 3) + 4 * k, 4)}, {rng('a', aB2 + 4 * k, 4)}, {dd}") for k in range(4)]
            st = stores(n - 1) if n > 0 else []
            e(*interleave(mf[:2], nxt[2:]))
            e(*interleave(mf[2:], st))
        for g in stores(6):
            e(*g)
        self.stamp()

    def fused_reduce(self):
        e = self.e
        c = self.c
        x = self.sfx
        e(f"s_lshl_b32 s3, s{sBR}, 3", f"s_add_u32 s3, s3, s{sB}",
          f"s_lshl_b32 s4, s{sH}, 2", f"s_add_u32 s4, s4, s{sW}",
          f"s_mul_i32 s5, s3, {16 * 57344}",
          f"s_add_u32 s{S_K}, s{sWSP}, s5", f"s_addc_u32 s{S_K + 1}, s{sWSP + 1}, 0",
          f"s_mov_b32 s{S_K + 2}, {16 * 57344}",
          f"s_mov_b32 s{S_V}, s{sOUT}", f"s_mov_b32 s{S_V + 1}, s{sOUT + 1}", f"s_mov_b32 s{S_V + 2}, 917504",
          "v_mbcnt_lo_u32_b32 v0, -1, 0", "v_mbcnt_hi_u32_b32 v0, -1, v0",
          "s_lshl_b32 s5, s4, 10", "v_lshl_add_u32 v1, v0, 4, s5",
          "s_mul_hi_u32 s5, s4, 0x12492493",
          "s_mul_i32 s6, s5, 14", "s_sub_u32 s6, s4, s6",
          "s_and_b32 s7, s5, 1", "s_lshr_b32 s5, s5, 1",
          f"s_lshl_b32 s{sT0}, s{sB}, 6", "s_lshl_b32 s7, s7, 5", f"s_add_u32 s{sT0}, s{sT0}, s7",
          f"s_mul_i32 s{sT0}, s{sT0}, 1792",
          f"s_mul_i32 s7, s{sBR}, 896", f"s_add_u32 s{sT0}, s{sT0}, s7",
          "s_mul_i32 s5, s5, 448", f"s_add_u32 s{sT0}, s{sT0}, s5",
          "s_lshl_b32 s6, s6, 5", f"s_add_u32 s{sT0}, s{sT0}, s6",
          "v_and_b32 v2, 31, v0", "v_mul_u32_u24 v2, 1792, v2",
          "v_lshrrev_b32 v3, 5, v0", "v_lshl_add_u32 v2, v3, 4, v2",
          f"v_add_u32 v2, s{sT0}, v2",
          "v_and_b32 v3, 15, v0", "v_lshlrev_b32 v3, 2, v3",
          f"s_lshl_b32 s5, s{sH}, 2", f"s_cmp_eq_u32 s{sW}, 0", f"s_cselect_b32 s5, s5, 0x{OOB:x}",
          "v_lshl_add_u32 v4, v0, 6, s5",
          "v_mov_b32 v5, 1",
          f"v_readfirstlane_b32 s6, v{vRdy}",
          f"s_mov_b32 s7, {SPIN_MAX}",
          "s_cmp_eq_u32 s6, 1", f"s_cbranch_scc1 L_ready{x}",
          f"L_rdy_spin{x}:",
          f"buffer_load_dword v{vRdy}, off, {srd(S_DBG)}, 0 sc1",
          "s_waitcnt vmcnt(0)",
          f"v_readfirstlane_b32 s6, v{vRdy}",
          "s_sub_u32 s7, s7, 1", "s_cmp_eq_u32 s7, 0", f"s_cbranch_scc1 L_ready{x}",
          "s_cmp_eq_u32 s6, 1", f"s_cbranch_scc0 L_rdy_spin{x}",
          f"L_ready{x}:",
          "s_waitcnt vmcnt(0)")
        self.stamp()
        e("s_barrier",
          f"buffer_store_dword v5, v4, {srd(S_FL)}, 0 offen sc1",
          f"s_cmp_ge_u32 s{sH}, 14", f"s_cbranch_scc1 L_fin{x}",
          f"s_mov_b32 s7, {SPIN_MAX}",
          f"L_poll{x}:",
          f"buffer_load_dword v6, v3, {srd(S_FL)}, 0 offen sc1",
          "s_waitcnt vmcnt(0)",
          "v_cmp_ne_u32 vcc, 1, v6",
          "s_nop 1",
          f"s_cbranch_vccz L_go{x}")
        if c["sleep"]:
            e(f"s_sleep {c['sleep']}")
        e("s_sub_u32 s7, s7, 1", "s_cmp_eq_u32 s7, 0", f"s_cbranch_scc0 L_poll{x}",
          f"L_go{x}:",
          f"s_mov_b32 s{sSOFF}, 0")
        for h in range(16):
            e(f"buffer_load_dwordx4 {rng('v', 64 + 4 * h, 4)}, v1, {srd(S_K)}, s{sSOFF} offen {c['aux_rd']}")
            if h < 15:
                e(f"s_add_u32 s{sSOFF}, s{sSOFF}, 57344")
        e("s_mov_b32 s4, 0x00003f80", "s_mov_b32 s5, 0x3f800000")
        for h in range(16):
            e(f"s_waitcnt vmcnt({15 - h})")
            for k in range(4):
                src = 64 + 4 * h + k
                for hi in range(2):
                    a = 48 + 2 * k + hi
                    e(f"v_dot2_f32_bf16 v{a}, v{src}, s{4 + hi}, {'0' if h == 0 else 'v%d' % a}")
        for k in range(4):
            e(f"v_cvt_pk_bf16_f32 v{44 + k}, v{48 + 2 * k}, v{49 + 2 * k}")
        e(f"buffer_store_dwordx4 v[44:47], v2, {srd(S_V)}, 0 offen")
        e(f"L_fin{x}:")

    def finish(self):
        e = self.e
        if self.c["stamps"]:
            e("s_waitcnt vmcnt(0)")
            while self.nstamp < 10:
                self.stamp()
            e("s_waitcnt lgkmcnt(0)",
              "s_lshl_b32 s6, s2, 2", f"s_add_u32 s6, s6, s{sW}", "s_lshl_b32 s6, s6, 7",
              "s_add_u32 s6, s6, 0x1000000",
              f"s_add_u32 s{S_WS}, s{sWSP}, s6", f"s_addc_u32 s{S_WS + 1}, s{sWSP + 1}, 0",
              f"s_mov_b32 s{S_WS + 2}, 128",
              "v_mov_b32 v0, 0")
            if self.c["stamps"] == 2:
                e(f"v_writelane_b32 v{vT3}, s98, 60", "s_memtime s[96:97]", "s_waitcnt lgkmcnt(0)",
                  "v_mov_b32 v2, s96", "v_mov_b32 v3, s100",
                  f"buffer_store_dwordx2 v[2:3], v0, {srd(S_WS)}, 0 offen offset:120",
                  "s_lshl_b32 s7, s2, 2", f"s_add_u32 s7, s7, s{sW}", "s_lshl_b32 s7, s7, 9",
                  "s_add_u32 s7, s7, 0x1100000",
                  f"s_add_u32 s{S_X}, s{sWSP}, s7", f"s_addc_u32 s{S_X + 1}, s{sWSP + 1}, 0", f"s_mov_b32 s{S_X + 2}, 512",
                  "v_mbcnt_lo_u32_b32 v4, -1, 0", "v_mbcnt_hi_u32_b32 v4, -1, v4", "v_lshlrev_b32 v4, 2, v4",
                  f"buffer_store_dword v{vT2}, v4, {srd(S_X)}, 0 offen",
                  f"buffer_store_dword v{vT3}, v4, {srd(S_X)}, 0 offen offset:256")
            for k in range(10):
                r = sSTAMP + 2 * k
                e(f"v_mov_b32 v2, s{r}", f"v_mov_b32 v3, s{r + 1}",
                  f"buffer_store_dwordx2 v[2:3], v0, {srd(S_WS)}, 0 offen offset:{8 * k}")
        e("s_endpgm")

    def main(self):
        self.prologue()
        if self.c["aux_kva"] == "same":
            self.body()
        else:
            saved = (self.issued, self.nstamp, list(self.vm))
            self.e(f"s_cmp_eq_u32 s{sBR}, 0", "s_cbranch_scc1 L_branch_a")
            self.body()
            self.issued, self.nstamp, self.vm = saved
            self.sfx = "_a"
            self.kv_aux = self.c["aux_kva"]
            self.e(".p2align 6", "L_branch_a:")
            self.body()
        self.e("L_main_end:", "s_endpgm")

    def reduce_kernel(self):
        e = self.e
        c = self.c
        e("s_cmp_ge_u32 s2, 224", "s_cbranch_scc1 L_red_end")
        e("s_load_dwordx2 s[4:5], s[0:1], 80", "s_load_dwordx2 s[6:7], s[0:1], 96")
        e("v_lshrrev_b32 v1, 6, v0", "v_and_b32 v0, 63, v0", "v_readfirstlane_b32 s16, v1")
        e("s_mul_hi_u32 s17, s2, 0x12492493",
          "s_mul_i32 s18, s17, 14",
          "s_sub_u32 s18, s2, s18",
          "s_lshl_b32 s18, s18, 2",
          "s_add_u32 s18, s18, s16",
          f"s_mul_i32 s19, s17, {16 * 57344}",
          "s_lshl_b32 s20, s18, 10",
          "v_lshl_add_u32 v1, v0, 4, s20",
          "s_waitcnt lgkmcnt(0)",
          "s_add_u32 s8, s6, s19", "s_addc_u32 s9, s7, 0",
          f"s_mov_b32 s10, {16 * 57344}", "s_mov_b32 s11, 0x00020000",
          "s_mov_b32 s21, 0")
        for h in range(16):
            e(f"buffer_load_dwordx4 {rng('v', 16 + 4 * h, 4)}, v1, s[8:11], s21 offen {c['aux_rd']}")
            if h < 15:
                e("s_add_u32 s21, s21, 57344")
        e("s_mov_b32 s12, s4", "s_mov_b32 s13, s5", "s_mov_b32 s14, 917504", "s_mov_b32 s15, 0x00020000")
        e("s_mul_hi_u32 s22, s18, 0x12492493",
          "s_mul_i32 s23, s22, 14",
          "s_sub_u32 s23, s18, s23",
          "s_and_b32 s24, s22, 1",
          "s_lshr_b32 s25, s22, 1",
          "s_and_b32 s26, s17, 7",
          "s_lshr_b32 s27, s17, 3",
          "s_lshl_b32 s26, s26, 6", "s_lshl_b32 s24, s24, 5", "s_add_u32 s26, s26, s24",
          "s_mul_i32 s26, s26, 1792",
          "s_mul_i32 s27, s27, 896", "s_add_u32 s26, s26, s27",
          "s_mul_i32 s25, s25, 448", "s_add_u32 s26, s26, s25",
          "s_lshl_b32 s23, s23, 5", "s_add_u32 s26, s26, s23",
          "v_and_b32 v2, 31, v0", "v_mul_u32_u24 v2, 1792, v2",
          "v_lshrrev_b32 v3, 5, v0", "v_lshl_add_u32 v2, v3, 4, v2",
          "v_add_u32 v2, s26, v2",
          "s_mov_b32 s28, 0x00003f80", "s_mov_b32 s29, 0x3f800000")
        for h in range(16):
            e(f"s_waitcnt vmcnt({15 - h})")
            for x in range(4):
                src = 16 + 4 * h + x
                for hi in range(2):
                    a = 8 + 2 * x + hi
                    e(f"v_dot2_f32_bf16 v{a}, v{src}, s{28 + hi}, {'0' if h == 0 else 'v%d' % a}")
        for x in range(4):
            e(f"v_cvt_pk_bf16_f32 v{4 + x}, v{8 + 2 * x}, v{9 + 2 * x}")
        e("buffer_store_dwordx4 v[4:7], v2, s[12:15], 0 offen")
        e("L_red_end:", "s_endpgm")


HEADER = """; Fused Q-projection / attention / output-projection for both branches, then a cross-head reduce.
; Kernarg: A_x A_k A_v A_wq A_wo B_x B_k B_v B_wq B_wo out debug ws (8-byte pointers).
{launch}.amdgcn_target "amdgcn-amd-amdhsa--gfx950"
.text
"""

KD = """.amdhsa_kernel {label}
  .amdhsa_next_free_vgpr {vgpr}
  .amdhsa_next_free_sgpr 102
  .amdhsa_accum_offset {acc}
  .amdhsa_group_segment_fixed_size 0
  .amdhsa_kernarg_size 104
  .amdhsa_user_sgpr_count 2
  .amdhsa_user_sgpr_kernarg_segment_ptr 1
  .amdhsa_system_sgpr_workgroup_id_x 1
  .amdhsa_float_denorm_mode_32 3
.end_amdhsa_kernel
"""


def entry(label):
    return f".globl {label}\n.p2align 8\n.type {label},@function\n{label}:\n"


def build(cfg):
    g = Gen(cfg)
    g.main()
    main = render(pad_hazards(g.o))
    if cfg["fused"]:
        launch = "; @launch grid=(256,1,1) block=(256,1,1) lds=163840\n"
    else:
        launch = (f"; @launch kernel={NAME}_kernel grid=(256,1,1) block=(256,1,1) lds=163840\n"
                  "; @launch kernel=reduce_heads_kernel grid=(224,1,1) block=(256,1,1) lds=0\n")
    s = HEADER.format(launch=launch)
    s += entry(NAME + "_kernel") + main
    if not cfg["fused"]:
        r = Gen(cfg)
        r.reduce_kernel()
        s += entry("reduce_heads_kernel") + render(pad_hazards(r.o))
    s += '.section .rodata,"a"\n.p2align 6\n'
    s += KD.format(label=NAME + "_kernel", vgpr=448, acc=256)
    if not cfg["fused"]:
        s += ".p2align 6\n" + KD.format(label="reduce_heads_kernel", vgpr=80, acc=80)
    return s


if __name__ == "__main__":
    ap = argparse.ArgumentParser()
    ap.add_argument("-o", default="cdna_kernels/" + NAME + ".s")
    ap.add_argument("opts", nargs="*")
    a = ap.parse_args()
    cfg = dict(DEFAULTS)
    for o in a.opts:
        k, v = o.split("=", 1)
        assert k in cfg, k
        cfg[k] = type(cfg[k])(v.replace("+", " "))
    open(a.o, "w").write(build(cfg))
    print("wrote", a.o, json.dumps(cfg), file=sys.stderr)
```

```python
import re

TRANS = ("v_exp_f32", "v_rcp_f32", "v_log_f32", "v_rsq_f32", "v_sqrt_f32")


def regs_of(op):
    op = op.strip().lstrip("-")
    m = re.fullmatch(r"([vas])\[(\d+):(\d+)\]", op)
    if m:
        return [(m.group(1), i) for i in range(int(m.group(2)), int(m.group(3)) + 1)]
    m = re.fullmatch(r"([vas])(\d+)", op)
    if m:
        return [(m.group(1), int(m.group(2)))]
    if op == "m0":
        return [("m", 0)]
    if op == "vcc":
        return [("s", 106), ("s", 107)]
    if op == "exec":
        return [("s", 126), ("s", 127)]
    return []


def rng(kind, base, n):
    return f"{kind}{base}" if n == 1 else f"{kind}[{base}:{base + n - 1}]"


class Ins:
    def __init__(self, text, kind, reads=(), writes=(), **kw):
        self.text = text
        self.kind = kind
        self.reads = set(reads)
        self.writes = set(writes)
        self.__dict__.update(kw)

    def states(self):
        if self.kind in ("label", "comment"):
            return 0
        if self.kind == "nop":
            return self.n
        return 1


def _split(ops):
    return [o.strip() for o in ops.split(",")]


def I(text):
    text = text.strip()
    if text.endswith(":"):
        return Ins(text, "label")
    if text.startswith(";") or text.startswith("."):
        return Ins(text, "comment")
    parts = text.split(None, 1)
    mn = parts[0]
    rest = parts[1] if len(parts) > 1 else ""
    if mn == "s_nop":
        return Ins(text, "nop", n=int(rest) + 1)
    if mn in ("s_waitcnt", "s_barrier", "s_endpgm", "s_setprio", "s_sleep", "s_branch") or mn.startswith("s_cbranch"):
        return Ins(text, "ctl")
    if mn.startswith("v_mfma"):
        d, a, b, c = _split(rest)
        passes = 8 if "32x32x16" in mn else 4
        return Ins(text, "mfma", regs_of(a) + regs_of(b) + regs_of(c), regs_of(d),
                   ab=set(regs_of(a) + regs_of(b)), c=regs_of(c), d=regs_of(d), passes=passes)
    if mn.startswith("ds_read"):
        o = _split(rest)
        return Ins(text, "ds", regs_of(o[1].split()[0]), regs_of(o[0]), load=True)
    if mn.startswith("ds_write"):
        o = _split(rest)
        return Ins(text, "ds", regs_of(o[0]) + regs_of(o[1].split()[0]), [], load=False)
    if mn.startswith("buffer_load"):
        o = _split(rest)
        if " lds" in text:
            r = regs_of(o[0]) + regs_of(o[1]) + regs_of(o[2].split()[0]) + [("m", 0)]
            return Ins(text, "vmem", r, [], dma=True, load=True)
        r = regs_of(o[1]) + regs_of(o[2]) + regs_of(o[3].split()[0])
        return Ins(text, "vmem", r, regs_of(o[0]), dma=False, load=True)
    if mn.startswith("global_load"):
        o = _split(rest)
        return Ins(text, "vmem", regs_of(o[1]), regs_of(o[0]), dma=False, load=True)
    if mn.startswith("buffer_store") or mn.startswith("buffer_atomic"):
        o = _split(rest)
        r = regs_of(o[0]) + regs_of(o[1]) + regs_of(o[2]) + regs_of(o[3].split()[0])
        wide = set(regs_of(o[0])) if ("x4" in mn or "x3" in mn) else set()
        return Ins(text, "vmem", r, [], dma=False, load=False, wide=wide)
    if mn.startswith("buffer_"):
        return Ins(text, "ctl")
    if mn.startswith("s_load") or mn.startswith("s_memtime") or mn.startswith("s_memrealtime"):
        o = _split(rest)
        return Ins(text, "smem", sum((regs_of(x) for x in o[1:]), []), regs_of(o[0]))
    if mn.startswith("s_cmp"):
        o = _split(rest)
        return Ins(text, "salu", sum((regs_of(x) for x in o), []), [])
    if mn.startswith("s_"):
        o = _split(rest)
        return Ins(text, "salu", sum((regs_of(x) for x in o[1:]), []), regs_of(o[0]))
    if mn.startswith("v_"):
        rest = re.split(r"\s+(?:op_sel|neg_lo|neg_hi)", rest)[0]
        o = _split(rest)
        o = [x.split()[0] if x else x for x in o]
        w = regs_of(o[0])
        r = sum((regs_of(x) for x in o[1:]), [])
        if mn.startswith("v_permlane"):
            r += regs_of(o[0])
            w += regs_of(o[1])
        if mn.startswith("v_add_co") or mn.startswith("v_addc_co"):
            w += regs_of(o[1])
            r = sum((regs_of(x) for x in o[2:]), [])
        if mn.startswith("v_fmac") or mn.startswith("v_dot2c"):
            r += regs_of(o[0])
        return Ins(text, "valu", r, w, mn=mn, trans=any(mn.startswith(t) for t in TRANS),
                   dot=mn.startswith("v_dot"))
    raise ValueError("unparsed instruction: " + text)


XDL_RAW = {4: 8, 8: 12}
XDL_C_OVERLAP = {4: 6, 8: 10}
XDL_C_WAR = {4: 3, 8: 7}


def required_gap(p, c):
    need = 0
    if p.kind == "valu":
        vw = {r for r in p.writes if r[0] in "va"}
        sw = {r for r in p.writes if r[0] == "s"}
        if c.kind == "mfma" and vw & c.reads:
            need = max(need, 3 if p.dot else 2)
        if c.kind == "mfma" and p.mn.startswith("v_pk_") and "op_sel" in p.text:
            need = max(need, 2)
        if c.kind == "valu":
            if c.mn.startswith("v_permlane") and vw & c.reads:
                need = max(need, 2)
            if (c.mn.startswith("v_readfirstlane") or c.mn.startswith("v_readlane")) and vw & c.reads:
                need = max(need, 1)
            if p.trans and not c.trans and vw & c.reads:
                need = max(need, 1)
            if sw & c.reads:
                need = max(need, 2)
            if p.dot and vw & (c.reads | c.writes):
                same_acc = c.dot and c.mn == p.mn and c.writes == p.writes
                if not same_acc:
                    need = max(need, 3)
        if c.kind in ("vmem", "ds") and p.dot and vw & c.reads:
            need = max(need, 3)
        if c.kind == "vmem" and sw & c.reads:
            need = max(need, 5)
        if c.kind == "salu" and sw & c.reads:
            need = max(need, 1)
    if p.kind == "mfma":
        d = set(p.d)
        if c.kind == "mfma":
            if d & c.ab:
                need = max(need, XDL_RAW[p.passes])
            if d & set(c.c) and (c.c != p.d or c.passes != p.passes):
                need = max(need, XDL_C_OVERLAP[p.passes])
        elif c.kind in ("valu", "ds", "vmem"):
            if d & (c.reads | c.writes):
                need = max(need, XDL_RAW[p.passes])
            if c.kind == "valu" and set(p.c) & c.writes:
                need = max(need, XDL_C_WAR[p.passes])
    if p.kind == "salu" and ("m", 0) in p.writes and c.kind == "vmem" and getattr(c, "dma", False):
        need = max(need, 1)
    if p.kind == "vmem" and getattr(p, "wide", None) and p.wide & c.writes:
        need = max(need, 2)
    return need


def pad_hazards(ins, window=24):
    out = []
    for c in ins:
        if c.kind not in ("label", "comment", "nop", "ctl"):
            dist = 0
            pad = 0
            for p in reversed(out):
                if dist >= window:
                    break
                need = required_gap(p, c) if p.kind not in ("label", "comment", "nop", "ctl") else 0
                pad = max(pad, need - dist)
                dist += p.states()
            while pad > 0:
                n = min(pad, 16)
                out.append(I(f"s_nop {n - 1}"))
                pad -= n
        out.append(c)
    return out


def render(ins):
    lines = []
    for i in ins:
        lines.append(i.text if i.kind == "label" or i.text.startswith(".") else "    " + i.text)
    return "\n".join(lines) + "\n"


def interleave(mfmas, fillers, first=0):
    out = []
    fillers = list(fillers)
    for g in fillers[:first]:
        out += g
    fillers = fillers[first:]
    n = len(mfmas)
    if n == 0:
        for g in fillers:
            out += g
        return out
    k = 0
    for i, m in enumerate(mfmas):
        out.append(m)
        left = n - i
        take = -(-(len(fillers) - k) // left)
        for g in fillers[k:k + take]:
            out += g
        k += take
    return out
```

```python
import argparse
import json
import math
import struct
import sys

from asmdsl import I, interleave, pad_hazards, render, rng

NAME = "concat_heads__gqa_block_cached__mha_block_cached__near_ridge"

DEFAULTS = dict(
    rpg=4,
    kvs="5l,5l,5l,4l",
    ws="4l,4l,4s,4f",
    over="8:5b/9:6b/10:6b/11:6b/36:4b/37:4b/38:4b/39:4b/40:4m/41:5b/42:5m/43:6b/44:6m/45:7b/46:7b/47:6b",
    pre=7,
    aux_x="", aux_w="", aux_kv="nt", aux_st="sc1", aux_rd="sc1",
    aux_kva="same",
    rot=1, wsw=1, psw=0, xsw=0, touch3=0,
    fused=1,
    sleep=1,
    cpf=2,
    aux_out="",
    thr=0,
    stamps=0,
)

EX = 131072
OOB = 0x80000000
FLAGS = 0xE00000
SPIN_MAX = 65536

S_X, S_K, S_V, S_WQ, S_WO, S_WS, S_FL = 8, 12, 16, 20, 24, 28, 32
S_DBG = S_X
sW, sQB, sS, sBR, sB, sH, sWSW, sT0, sT1, sT2, sSOFF, sM4096, sC = range(58, 71)
sKP, sWQP, sWOP, sM1024, sHP = 72, 74, 76, 78, 79
sSL, sWOJ = 80, 84
sKVOFF = 88
sOUT, sDBGP, sWSP = 92, 94, 56
sSTAMP = 36

vWqD, vKD, vVD, vWoD = 1, 2, 4, 5
vWqR, vKR, vVRo, vVRp, vWoR = 12, 13, 17, 18, 19
vTouch = 21
vExOwn, vExPar, vExQ, vExOa, vExOb, vSt = 26, 27, 28, 29, 30, 31
vL, vM, vRdy, vRL, vLead, vT2, vT3 = 32, 34, 35, 36, 37, 38, 39
vCV, vG1, vP, vS = 40, 48, 64, 128
vMC, vT0, vT1 = 40, 46, 47
vSUM = 22
aX, aPP, aB2, aF = 0, 0, 112, 128


def srd(n):
    return f"s[{n}:{n + 3}]"


def pair(n):
    return f"v[{n}:{n + 1}]"


def tile_list():
    t = [("x", 0, i) for i in range(4)]
    for j in range(4):
        t += [("wq", j, i) for i in range(4)] + [("k", j, i) for i in range(4)]
    for j in range(4):
        t += [("v", j, i) for i in range(4)] + [("wo", j, i) for i in range(4)]
    return t


TILES = tile_list()


class Gen:
    def __init__(self, cfg):
        self.c = cfg
        self.o = []
        self.issued = 0
        self.nstamp = 0
        self.vm = []
        self.sfx = ""
        self.kv_aux = cfg["aux_kv"]
        self.sched = self.make_sched(cfg)

    def e(self, *lines):
        for ln in lines:
            ins = I(ln) if isinstance(ln, str) else ln
            if ins.kind == "vmem":
                self.vm.append(getattr(ins, "tag", None))
            self.o.append(ins)

    def stamp(self):
        if self.c["stamps"] and self.nstamp < 10:
            r = sSTAMP + 2 * self.nstamp
            self.e(f"s_memrealtime s[{r}:{r + 1}]")
            self.nstamp += 1

    def make_srd(self, dst, pa, pb, off, nrec):
        self.e(f"s_cmp_eq_u32 s{sBR}, 0",
               f"s_cselect_b32 s{dst}, s{pa}, s{pb}",
               f"s_cselect_b32 s{dst + 1}, s{pa + 1}, s{pb + 1}",
               f"s_add_u32 s{dst}, s{dst}, s{off}",
               f"s_addc_u32 s{dst + 1}, s{dst + 1}, 0",
               f"s_mov_b32 s{dst + 2}, {nrec}",
               f"s_mov_b32 s{dst + 3}, 0x00020000")

    def x_dma(self, n):
        i, u = divmod(n, 4)
        g = []
        if u == 0:
            g += [f"s_xor_b32 s6, s7, {i}",
                  f"s_mul_i32 s{sSOFF}, s6, {16 * 896}",
                  "s_cmp_lt_u32 s6, 2",
                  f"s_cselect_b32 s5, {EX}, 0",
                  "s_lshl_b32 s6, s6, 14",
                  f"s_add_u32 s5, s5, s{sT2}",
                  "s_add_u32 m0, s5, s6"]
        else:
            g += ["s_add_u32 m0, m0, 16"]
        ld = I(f"buffer_load_dwordx4 v41, {srd(S_X)}, s{sSOFF} offen offset:{896 * u} {self.c['aux_x']} lds")
        ld.tag = i
        return g + [ld]

    def prologue(self):
        c = self.c
        e = self.e
        e("s_cmp_ge_u32 s2, 256", "s_cbranch_scc1 L_main_end")
        e("s_load_dwordx16 s[36:51], s[0:1], 0",
          "s_load_dwordx4 s[52:55], s[0:1], 64",
          f"s_load_dwordx4 s[{sOUT}:{sOUT + 3}], s[0:1], 80",
          f"s_load_dwordx2 s[{sWSP}:{sWSP + 1}], s[0:1], 96")
        if c["stamps"]:
            e("s_memrealtime s[98:99]", "s_memtime s[100:101]")
        e("v_lshrrev_b32 v40, 6, v0", "v_and_b32 v0, 63, v0", f"v_readfirstlane_b32 s{sW}, v40")
        e("s_and_b32 s3, s2, 7",
          f"s_lshr_b32 s{sBR}, s2, 7",
          f"s_bfe_u32 s{sB}, s2, 0x30004",
          f"s_bfe_u32 s{sHP}, s2, 0x10003",
          f"s_mul_i32 s{sT0}, s{sW}, {4 * 896}",
          f"v_lshl_add_u32 v41, v0, 4, s{sT0}",
          f"s_mul_i32 s{sT1}, s{sB}, 57344",
          f"s_mul_i32 s{sT2}, s{sW}, {4 * 912}",
          f"s_lshl1_add_u32 s{sH}, s3, s{sHP}",
          f"s_lshl_b32 s{sT0}, s{sH}, 9")
        e(f"s_lshl_b32 s7, s{sHP}, 1" if c["xsw"] else "s_mov_b32 s7, 0")
        if c["touch3"]:
            e(f"s_mul_i32 s6, s{sB}, 56", f"s_mul_i32 s5, s{sW}, 14", "s_add_u32 s6, s6, s5",
              "s_lshl_b32 s6, s6, 13", "s_add_u32 s6, s6, 384",
              f"v_lshl_add_u32 v{vTouch}, v0, 13, s6")
        if c["cpf"]:
            n = c["cpf"]
            e("s_getpc_b64 s[4:5]", "L_pc_base:",
              "s_lshr_b32 s6, s2, 3", f"s_lshl2_add_u32 s6, s6, s{sW}",
              f"s_mul_i32 s6, s6, {n}",
              f"v_add_u32 v42, s6, v0",
              "v_lshlrev_b32 v42, 7, v42",
              "v_min_u32 v42, L_main_end-L_pc_base, v42",
              "v_mov_b32 v43, s5",
              "v_add_co_u32 v42, vcc, s4, v42",
              "v_addc_co_u32 v43, vcc, 0, v43, vcc",
              f"s_mov_b64 exec, {(1 << n) - 1}",
              f"global_load_dword v{vTouch}, v[42:43], off",
              "s_mov_b64 exec, -1")
        e("s_waitcnt lgkmcnt(0)")
        if c["touch3"]:
            self.make_srd(S_WQ, 42, 52, sT0, 0)
            e(f"s_sub_u32 s{S_WQ + 2}, 3670016, s{sT0}",
              "s_mov_b64 exec, 0x3fff",
              f"buffer_load_dword v{vTouch}, v{vTouch}, {srd(S_WQ)}, 0 offen",
              "s_mov_b32 exec_lo, -1")
        self.make_srd(S_X, 36, 46, sT1, 57344)
        e("s_mov_b32 exec_hi, 0x00ffffff")
        for n in range(11):
            e(*self.x_dma(n))
        e("s_mov_b32 exec_hi, -1")
        if not c["touch3"]:
            self.make_srd(S_WQ, 42, 52, sT0, 0)
            e(f"s_sub_u32 s{S_WQ + 2}, 3670016, s{sT0}")
        e(f"s_and_b32 s{sQB}, s{sW}, 1",
          f"s_lshr_b32 s{sS}, s{sW}, 1",
          f"s_lshl_b32 s{sM4096}, s{sW}, 12",
          f"s_lshl_b32 s{sM1024}, s{sW}, 10")
        e(f"s_lshr_b32 s{sWSW}, s{sB}, 2" if c["wsw"] else f"s_mov_b32 s{sWSW}, 0")
        e(f"s_mul_i32 s{sWQP}, s{sWSW}, {224 * 8192}",
          f"s_sub_u32 s{sWQP + 1}, {224 * 8192}, s{sWQP}")
        e(*self.slice_setup(0))
        e("v_lshrrev_b32 v42, 3, v0",
          "v_and_b32 v43, 7, v0",
          "v_bfe_u32 v44, v0, 4, 1",
          "v_lshlrev_b32 v44, 2, v44",
          "v_xor_b32 v44, v44, v43",
          "v_lshlrev_b32 v44, 4, v44",
          f"s_lshl_b32 s6, s{sW}, 16",
          "v_lshl_add_u32 v45, v42, 13, s6",
          f"v_add_u32 v{vWqD}, v45, v44")
        e(f"s_lshl4_add_u32 s6, s{sB}, s{sH}", f"s_lshl3_add_u32 s5, s{sB}, s3",
          f"s_cmp_eq_u32 s{sBR}, 0", "s_cselect_b32 s6, s5, s6",
          f"s_cselect_b32 s5, s{sHP}, 0" if c["psw"] else "s_mov_b32 s5, 0",
          f"s_lshl_b32 s{sKVOFF}, s6, 18",
          f"s_lshl_b32 s{sKP}, s5, 17", f"s_xor_b32 s{sKP + 1}, s{sKP}, 0x20000")
        self.make_srd(S_K, 38, 48, sKVOFF, 262144)
        e("v_and_b32 v45, 1, v42",
          "v_lshrrev_b32 v46, 1, v42",
          "v_lshl_add_u32 v45, v46, 3, v45",
          f"s_lshl_b32 s6, s{sW}, 14",
          "v_lshl_add_u32 v45, v45, 9, s6",
          f"v_add_u32 v{vVD}, v45, v44",
          "v_xor_b32 v46, v46, v43",
          f"v_lshl_add_u32 v{vKD}, v46, 4, v45",
          f"v_xor_b32 v{vKD + 1}, 64, v{vKD}")
        e("v_lshrrev_b32 v51, 5, v0",
          "v_bfe_u32 v52, v0, 4, 1",
          f"s_cmp_eq_u32 s{sQB}, 0", "s_cselect_b32 s6, 4, 1", "s_lshl_b32 s6, s6, 15",
          "v_lshl_add_u32 v57, v52, 14, s6",
          "v_and_b32 v60, 15, v0",
          "v_mul_u32_u24 v60, 912, v60",
          "v_lshl_add_u32 v60, v51, 4, v60",
          f"s_mul_i32 s6, s{sWSW}, 448",
          "v_add3_u32 v61, v57, v60, s6",
          "s_sub_u32 s6, 448, s6",
          "v_add3_u32 v62, v57, v60, s6",
          "v_bfe_u32 v53, v0, 2, 2",
          "v_and_b32 v54, 1, v0",
          "v_bfe_u32 v55, v0, 1, 1",
          "v_lshl_or_b32 v54, v54, 1, v55",
          "v_lshl_add_u32 v54, v52, 2, v54",
          "v_lshrrev_b32 v56, 1, v53",
          f"v_xor_b32 v56, s{sS}, v56",
          "v_lshl_add_u32 v56, v56, 3, v54",
          "v_lshl_add_u32 v57, v51, 3, v53",
          "v_lshl_add_u32 v57, v57, 4, v56",
          "v_lshlrev_b32 v57, 3, v57",
          f"v_add_u32 v{vWqR}, 0x10000, v57")
        e("s_mov_b32 exec_hi, 0x00ffffff")
        for n in range(11, 16):
            e(*self.x_dma(n))
        e("s_mov_b32 exec_hi, -1")
        self.issued = 4
        while self.issued <= c["pre"]:
            for g in self.dma_groups(self.issued):
                e(*g)
            self.issued += 1

    def slice_setup(self, j):
        if self.c["rot"]:
            ops = [f"s_add_u32 s6, s{sB}, {j}", "s_and_b32 s6, s6, 3"]
        else:
            ops = [f"s_mov_b32 s6, {j}"]
        return ops + [f"s_lshl_b32 s{sSL + j}, s6, 7", f"s_mul_i32 s{sWOJ + j}, s6, {64 * 896}"]

    def deferred(self, t):
        c = self.c
        e = self.e
        if t == 4:
            e("; key fragment and exchange addresses")
            e("v_and_b32 v40, 31, v0", "v_lshrrev_b32 v41, 5, v0",
              f"s_lshl_b32 s6, s{sS}, 13",
              "v_lshl_add_u32 v42, v40, 7, s6",
              "v_bfe_u32 v43, v0, 1, 3",
              "v_xor_b32 v43, v43, v41")
            for k in range(4):
                e(f"v_xor_b32 v44, {2 * k}, v43", f"v_lshl_add_u32 v{vKR + k}, v44, 4, v42")
            e(f"s_add_u32 s6, s{sM4096}, {EX}",
              f"v_lshl_add_u32 v{vExOwn}, v0, 4, s6",
              f"s_lshl_b32 s6, s{sQB}, 12", f"s_add_u32 s6, s6, {EX}",
              f"v_lshl_add_u32 v{vExQ}, v0, 4, s6")
            e(*self.slice_setup(1))
        if t == 7:
            e("; remaining descriptors")
            self.make_srd(S_V, 40, 50, sKVOFF, 262144)
            e(f"s_mul_i32 s{sT0}, s{sH}, 229376")
            self.make_srd(S_WO, 44, 54, sT0, 229376)
            e(f"s_lshl3_add_u32 s{sT1}, s{sBR}, s{sB}", f"s_lshl4_add_u32 s6, s{sT1}, s{sH}",
              f"s_mul_i32 s{sT0}, s6, 57344",
              f"s_add_u32 s{S_WS}, s{sWSP}, s{sT0}", f"s_addc_u32 s{S_WS + 1}, s{sWSP + 1}, 0",
              f"s_mov_b32 s{S_WS + 2}, 57344", f"s_mov_b32 s{S_WS + 3}, 0x00020000")
            if c["stamps"]:
                e(f"s_mov_b32 s{sSTAMP}, s90", f"s_mov_b32 s{sSTAMP + 1}, s91",
                  f"s_mov_b32 s{sSTAMP + 2}, s4", f"s_mov_b32 s{sSTAMP + 3}, s5")
                self.nstamp = 2
            if c["fused"]:
                e(f"s_lshl_b32 s6, s{sT1}, 12", f"s_add_u32 s6, s6, 0x{FLAGS:x}",
                  f"s_add_u32 s{S_FL}, s{sWSP}, s6", f"s_addc_u32 s{S_FL + 1}, s{sWSP + 1}, 0",
                  f"s_mov_b32 s{S_FL + 2}, 64", f"s_mov_b32 s{S_FL + 3}, 0x00020000",
                  f"s_lshl_b32 s6, s{sT1}, 2",
                  f"s_add_u32 s{S_DBG}, s{sDBGP}, s6", f"s_addc_u32 s{S_DBG + 1}, s{sDBGP + 1}, 0",
                  f"s_mov_b32 s{S_DBG + 2}, 4",
                  f"s_or_b32 s6, s{sH}, s{sW}", "s_cmp_eq_u32 s6, 0",
                  f"s_cselect_b32 s6, 0, 0x{OOB:x}",
                  f"v_lshl_add_u32 v{vLead}, v0, 2, s6",
                  f"v_mov_b32 v{vRdy}, 0",
                  f"buffer_store_dword v{vRdy}, v{vLead}, {srd(S_FL)}, 0 offen sc1")
        if t == 9:
            e("; value / output-weight fragment addresses")
            e(*self.slice_setup(2))
            e(*self.slice_setup(3))
            e("v_lshrrev_b32 v41, 5, v0", "v_bfe_u32 v42, v0, 4, 1", "v_bfe_u32 v43, v0, 2, 2",
              "v_lshl_add_u32 v41, v41, 2, v43",
              "v_lshrrev_b32 v43, 1, v43",
              "v_and_b32 v44, 3, v0",
              "v_lshl_add_u32 v44, v42, 2, v44",
              f"v_xor_b32 v45, s{sS}, v43",
              "v_lshl_add_u32 v45, v45, 3, v44",
              "v_lshl_add_u32 v45, v41, 4, v45",
              f"s_lshl_b32 s6, s{sS}, 13", "s_add_u32 s6, s6, 0x10000",
              f"v_lshl_add_u32 v{vVRo}, v45, 3, s6",
              f"v_xor_b32 v{vVRp}, 0x2000, v{vVRo}",
              "v_and_b32 v44, 1, v0", "v_bfe_u32 v45, v0, 1, 1",
              "v_lshl_or_b32 v44, v44, 1, v45",
              "v_lshl_add_u32 v44, v42, 2, v44",
              "v_mul_u32_u24 v41, 896, v41",
              "v_lshl_add_u32 v41, v44, 3, v41",
              f"s_mul_i32 s6, s{sS}, 7",
              "v_xor_b32 v45, s6, v43", f"v_lshl_add_u32 v{vWoR}, v45, 6, v41",
              "s_add_u32 s6, s6, 1",
              "v_xor_b32 v45, s6, v43", f"v_lshl_add_u32 v{vWoR + 1}, v45, 6, v41",
              f"v_xor_b32 v{vExPar}, 0x2000, v{vExOwn}",
              f"s_lshl_b32 s6, s{sWSW}, 13",
              f"v_add_u32 v{vExOa}, s6, v{vExQ}",
              f"v_xor_b32 v{vExOb}, 0x2000, v{vExOa}",
              f"s_mul_i32 s6, s{sW}, 14336",
              f"v_lshl_add_u32 v{vSt}, v0, 4, s6")
        if t == 17:
            e("; output-weight load offsets")
            cbits = struct.unpack("<I", struct.pack("<f", math.log2(math.e) / 16.0))[0]
            e(f"s_mov_b32 s{sC}, 0x{cbits:08x}", f"s_mov_b32 s{sC + 1}, 0x{cbits:08x}",
              f"s_mul_i32 s{sWOP}, s{sWSW}, {32 * 896}",
              f"s_sub_u32 s{sWOP + 1}, {32 * 896}, s{sWOP}",
              f"v_lshl_add_u32 v41, v0, 4, s{sM1024}")
            for u in range(7):
                e(f"v_add_u32 v42, {4096 * u}, v41",
                  "v_lshrrev_b32 v43, 8, v42",
                  "v_mul_u32_u24 v43, 147, v43",
                  "v_bfe_u32 v43, v43, 10, 1",
                  "v_lshlrev_b32 v43, 6, v43",
                  f"v_xor_b32 v{vWoD + u}, v43, v42")

    def dma_groups(self, t):
        c = self.c
        kind, j, i = TILES[t]
        p, q = i >> 1, i & 1
        g = []
        if kind in ("k", "v"):
            slot = (t % 8) * 16384
            head = [f"s_add_u32 m0, s{sM4096}, {slot}",
                    f"s_add_u32 s{sSOFF}, s{sSOFF}, 0x10000" if q else f"s_add_u32 s{sSOFF}, s{sKP + p}, s{sSL + j}"]
            for u in range(4):
                vo = vKD + (u & 1) if kind == "k" else vVD
                s = S_K if kind == "k" else S_V
                ld = f"buffer_load_dwordx4 v{vo}, {srd(s)}, s{sSOFF} offen offset:{1024 * u} {self.kv_aux} lds"
                g.append([I(x) for x in (head if u == 0 else []) + [ld]])
        else:
            base = ((t - q) % 8) * 16384
            for u in (range(4, 7) if q else range(4)):
                head = [f"s_add_u32 m0, s{sM1024}, {base + 4096 * u}"]
                if kind == "wq":
                    head.append(f"s_add_u32 s{sSOFF}, s{sSOFF}, 0x40000" if u else f"s_add_u32 s{sSOFF}, s{sWQP + p}, s{sSL + j}")
                    ld = f"buffer_load_dwordx4 v{vWqD}, {srd(S_WQ)}, s{sSOFF} offen {c['aux_w']} lds"
                else:
                    if u == 0:
                        head.append(f"s_add_u32 s{sSOFF}, s{sWOP + p}, s{sWOJ + j}")
                    ld = f"buffer_load_dwordx4 v{vWoD + u}, {srd(S_WO)}, s{sSOFF} offen {c['aux_w']} lds"
                g.append([I(x) for x in head + [ld]])
        for grp in g:
            grp[-1].tag = t
        return g

    @staticmethod
    def wo_read(dst, n, i, h):
        off = (i >> 1) * 32768 + ((i & 1) * 16 + 8 * h) * 896 + (n & ~1) * 64
        return I(f"ds_read_b64_tr_b16 {rng('a', dst, 2)}, v{vWoR + (n & 1)} offset:{off}")

    def frag(self, t, n):
        return aF + 32 * (t & 1) + 4 * n

    def read_groups(self, t):
        kind, j, i = TILES[t]
        base = i * 16384
        g = []
        if kind == "wq":
            for k in range(7):
                f = self.frag(t, k)
                for h in range(2):
                    g.append([I(f"ds_read_b64_tr_b16 {rng('a', f + 2 * h, 2)}, v{vWqR} offset:{(i >> 1) * 32768 + (i & 1) * 14336 + k * 2048 + h * 512}")])
        elif kind == "k":
            for u2 in range(2):
                for k in range(4):
                    f = self.frag(t, 4 * u2 + k)
                    g.append([I(f"ds_read_b128 {rng('a', f, 4)}, v{vKR + k} offset:{base + u2 * 4096}")])
        elif kind == "v":
            for pp in range(8):
                f = self.frag(t, pp)
                va = vVRo if pp < 4 else vVRp
                for h in range(2):
                    g.append([I(f"ds_read_b64_tr_b16 {rng('a', f + 2 * h, 2)}, v{va} offset:{base + (pp & 3) * 2048 + h * 1024}")])
        elif kind == "wo":
            for n in range(7):
                f = self.frag(t, n)
                for h in range(2):
                    g.append([self.wo_read(f + 2 * h, n, i, h)])
        return g

    def mfmas(self, t):
        kind, j, i = TILES[t]
        m = []

        def mf(d, a, b, zero):
            dd = rng('v', d, 16)
            m.append(I(f"v_mfma_f32_32x32x16_bf16 {dd}, {rng('a', a, 4)}, {b}, {'0' if zero else dd}"))
        if kind == "wq":
            for k in range(7):
                mf(vG1, self.frag(t, k), rng('a', aX + 4 * (7 * i + k), 4), i == 0 and k == 0)
        elif kind == "k":
            for k in range(4):
                for u2 in range(2):
                    mf(vS + 16 * (2 * i + u2), self.frag(t, 4 * u2 + k), rng('a', aB2 + 4 * k, 4), j == 0 and k == 0)
        elif kind == "v":
            for pp in range(8):
                b = rng('v', vP + 4 * (4 * i + pp), 4) if pp < 4 else rng('a', aPP + 4 * (4 * i + pp - 4), 4)
                mf(vG1, self.frag(t, pp), b, i == 0 and pp == 0)
        elif kind == "wo":
            for n in range(7):
                mf(vS + 16 * n, self.frag(t, n), rng('a', aB2 + 4 * i, 4), j == 0 and i == 0)
        return m

    def max_ops(self, i, acc):
        ops = []
        for n, r in enumerate(range(vS + 32 * i, vS + 32 * i + 32, 2)):
            a = acc[n & 1]
            if n < 2:
                ops.append(I(f"v_max_f32 v{a}, v{r}, v{r + 1}"))
            else:
                ops.append(I(f"v_max3_f32 v{a}, v{r}, v{r + 1}, v{a}"))
        ops.append(I(f"v_max_f32 v{acc[0]}, v{acc[0]}, v{acc[1]}"))
        ops.append(I(f"v_mul_f32 v{acc[0]}, s{sC}, v{acc[0]}"))
        return ops

    def exp_ops(self, i, m, lo=0, hi=8):
        g = []
        for q in range(lo, hi):
            r = vS + 32 * i + 4 * q
            g.append([I(f"v_pk_fma_f32 {pair(r + x)}, {pair(r + x)}, s[{sC}:{sC + 1}], {pair(m)} "
                        "op_sel_hi:[1,1,0] neg_lo:[0,0,1] neg_hi:[0,0,1]") for x in (0, 2)])
            g.append([I(f"v_exp_f32 v{r + x}, v{r + x}") for x in range(2)])
            g.append([I(f"v_exp_f32 v{r + x}, v{r + x}") for x in range(2, 4)])
        return g

    def early_exp(self, i):
        m = vMC + 2 * i
        g = [[x] for x in self.max_ops(i, [m, m + 1])] + self.exp_ops(i, m)
        if i < 2:
            acc = vSUM + 2 * i
            r = vS + 32 * i
            g.append([I(f"v_pk_add_f32 {pair(acc)}, {pair(r)}, {pair(r + 2)}")])
            g += [[I(f"v_pk_add_f32 {pair(acc)}, {pair(acc)}, {pair(r + x)}")] for x in range(4, 32, 2)]
        return g

    def pack_ops(self, i):
        ops = []
        if i == 0:
            ops.append(I(f"v_pk_mul_f32 {pair(vL)}, {pair(vSUM)}, {pair(vMC)} op_sel_hi:[1,0]"))
        if i == 1:
            ops.append(I(f"v_pk_fma_f32 {pair(vL)}, {pair(vSUM + 2)}, {pair(vMC + 2)}, {pair(vL)} op_sel_hi:[1,0,1]"))
        for q in range(8):
            r = vS + 32 * i + 4 * q
            p = vP + 16 * i + 2 * q
            if i < 3:
                ops += [I(f"v_pk_mul_f32 {pair(r + x)}, {pair(r + x)}, {pair(vMC + 2 * i)} op_sel_hi:[1,0]") for x in (0, 2)]
            for x in (0, 2):
                if i >= 2:
                    ops.append(I(f"v_pk_add_f32 {pair(vL)}, {pair(vL)}, {pair(r + x)}"))
                ops.append(I(f"v_cvt_pk_bf16_f32 v{p + x // 2}, v{r + x}, v{r + x + 1}"))
        return ops

    def p_writes(self, i):
        return [[I(f"ds_write_b128 v{vExOwn}, {rng('v', vP + 16 * i + 4 * f, 4)} offset:{(i & 1) * 16384 + f * 1024}")]
                for f in range(4)]

    def g1_publish(self, scale):
        e = self.e
        for x in range(8):
            r = vG1 + 2 * x
            if scale:
                e(f"v_pk_mul_f32 {pair(r)}, {pair(r)}, {pair(vRL)} op_sel_hi:[1,0]")
        for x in range(8):
            e(f"v_cvt_pk_bf16_f32 v{vCV + x}, v{vG1 + 2 * x}, v{vG1 + 2 * x + 1}")
            if x == 3:
                e(f"ds_write_b128 v{vExOwn}, {rng('v', vCV, 4)} offset:1024")
        e(f"ds_write_b128 v{vExOwn}, {rng('v', vCV + 4, 4)} offset:2048")

    def younger(self, tag):
        last = max(k for k, x in enumerate(self.vm) if x == tag)
        return len(self.vm) - 1 - last

    def sync(self, t, slot=None):
        slot = t - 4 if slot is None else slot
        fine = self.c["stamps"] == 2 and slot >= 0
        if fine:
            self.e("s_memtime s[96:97]")
        self.e(f"s_waitcnt vmcnt({self.younger(t)}) lgkmcnt(0)")
        if fine:
            self.e(f"v_writelane_b32 v{vT2}, s96, {slot}")
            if slot > 0:
                self.e(f"v_writelane_b32 v{vT3}, s98, {slot - 1}")
        self.e("s_barrier")
        if fine:
            self.e("s_memtime s[98:99]")

    @staticmethod
    def slot_free(u, t):
        if u < 8:
            return True
        prev = u - 8
        kind, _, i = TILES[prev]
        last_reader = prev + 1 if kind in ("wq", "wo") and i % 2 == 0 else prev
        if kind == "x":
            return i < 2 or t >= 4
        return last_reader < t

    def make_sched(self, cfg):
        order = "fslmb"
        over = dict(p.split(":") for p in cfg["over"].split("/") if p)
        sched = {}
        last = (3, 0)
        for u in range(cfg["pre"] + 1, len(TILES)):
            kind, _, i = TILES[u]
            spec = over.get(str(u)) or cfg["kvs" if kind in ("k", "v") else "ws"].split(",")[i]
            at = (min(63, u - int(spec[:-1])), order.index(spec[-1]))
            while not self.slot_free(u, at[0]):
                at = (at[0] + 1, 0)
            at = max(at, last)
            assert at[0] < u
            last = at
            sched.setdefault(at[0], {}).setdefault(order[at[1]], []).append(u)
        return sched

    def dma_at(self, t, pos):
        g = []
        for u in self.sched.get(t, {}).get(pos, []):
            assert u == self.issued
            g += self.dma_groups(u)
            self.issued += 1
        return g

    @staticmethod
    def mix(*lists):
        items = []
        for li, lst in enumerate(lists):
            for k, x in enumerate(lst):
                items.append(((k + 0.5) / len(lst), li, k, x))
        items.sort(key=lambda z: z[:3])
        return [z[3] for z in items]

    def weave(self, mf, front, reads, spread, late):
        if not mf:
            return sum(front + reads + spread + late, [])
        n = len(mf)
        gaps = [[] for _ in range(n)]
        taken = set()
        for k, g in enumerate(front):
            gaps[min(k, n - 1)].append(g)
            taken.add(min(k, n - 1))
        lo = len(front)
        hi = n - len(late)
        for k, g in enumerate(spread):
            at = min(n - 1, max(0, lo + (2 * k + 1) * max(hi - lo, 0) // (2 * len(spread))))
            gaps[at].append(g)
            taken.add(at)
        for k, g in enumerate(late):
            at = max(0, n - len(late) + k)
            gaps[at].append(g)
            taken.add(at)
        free = [k for k in range(n - 1) if k not in taken]
        rpg = self.c["rpg"] if "tr" in reads[0][0].text else max(1, self.c["rpg"] // 2)
        if len(free) * (rpg + 1) < len(reads):
            free = list(range(n - 1))
        per = max(rpg, -(-len(reads) // len(free)))
        for k, g in enumerate(reads):
            gaps[free[k // per]].insert(k % per, g)
        out = []
        for m, gs in zip(mf, gaps):
            out.append(m)
            for g in gs:
                out += g
        return out

    def b2_reads(self, kind):
        for k in range(4):
            if kind == "k":
                va, off = vExQ, (k >> 1) * 8192 + 1024 + (k & 1) * 1024
            else:
                va, off = (vExOa if k < 2 else vExOb), 1024 + (k & 1) * 1024
            self.e(f"ds_read_b128 {rng('a', aB2 + 4 * k, 4)}, v{va} offset:{off}")

    def body(self):
        e = self.e
        c = self.c
        e("; x fragments")
        self.sync(3)
        if c["stamps"]:
            e("s_mov_b32 s90, s98", "s_mov_b32 s91, s99", "s_memrealtime s[4:5]")
        xr = []
        for k in range(28):
            va, kk = (61, k) if k < 14 else (62, k - 14)
            xr.append([I(f"ds_read_b128 {rng('a', aX + 4 * k, 4)}, v{va} offset:{32 * kk}")])
        for g in self.dma_at(3, "f") + xr[:14] + self.dma_at(3, "s") + self.dma_at(3, "l") + self.dma_at(3, "m") + xr[14:] + self.dma_at(3, "b"):
            e(*g)
        for t in range(4, 64):
            kind, j, i = TILES[t]
            if t in (12, 36, 44, 60):
                self.stamp()
            self.sync(t)
            front = self.dma_at(t, "f")
            spread = self.dma_at(t, "s")
            late = self.dma_at(t, "l")
            if c["fused"] and t == 20:
                spread.append([I(f"v_mov_b32 v{vRdy}, 1"),
                               I(f"buffer_store_dword v{vRdy}, v{vLead}, {srd(S_DBG)}, 0 offen sc1")])
            if c["fused"] and t == 51:
                spread.append([I(f"buffer_load_dword v{vRdy}, off, {srd(S_DBG)}, 0 sc1")])
            reads = self.read_groups(t)
            prev = TILES[t - 1][0]
            mf = self.mfmas(t - 1) if prev != "x" and t != 36 else []
            if (kind, i) in (("k", 1), ("wo", 1)):
                self.b2_reads(kind)
                for g in front + reads[:4]:
                    e(*g)
                e("s_waitcnt lgkmcnt(4)")
                e(*self.weave(mf, [], reads[4:], spread, late))
            elif t == 36:
                e(f"ds_read_b32 v{vT1}, v{vExPar} offset:16384")
                for g in front + reads[:12]:
                    e(*g)
                e("s_waitcnt lgkmcnt(12)",
                  f"v_max_f32 v{vM}, v{vT0}, v{vT1}")
                for x in range(3):
                    e(f"v_sub_f32 v{vMC + 2 * x}, v{vMC + 2 * x}, v{vM}")
                for x in range(3):
                    e(f"v_exp_f32 v{vMC + 2 * x}, v{vMC + 2 * x}")
                e(*self.pack_ops(0))
                for g in spread + reads[12:] + self.p_writes(0) + late + self.dma_at(t, "m") + self.exp_ops(3, vM, 0, 4):
                    e(*g)
            elif t in (37, 38, 39, 40):
                pi = t - 37
                for f in range(4):
                    e(f"ds_read_b128 {rng('a', aPP + 4 * (4 * pi + f), 4)}, v{vExPar} offset:{(pi & 1) * 16384 + f * 1024}")
                if t == 40:
                    e(f"ds_read_b32 v{vT1}, v{vExOwn}")
                    e(*interleave(mf[:4], front + spread))
                    e("s_waitcnt lgkmcnt(0)")
                    extra = [[I(f"v_add_f32 v{vRL}, v{vL}, v{vT1}")], [I(f"v_rcp_f32 v{vRL}, v{vRL}")]]
                    e(*interleave(mf[4:], extra + reads + late))
                else:
                    for g in front:
                        e(*g)
                    if i == 1:
                        for g in self.exp_ops(3, vM, 4, 8):
                            e(*g)
                    e(*self.pack_ops(i))
                    tail = []
                    if i == 3:
                        e(f"v_add_f32 v{vL}, v{vL}, v{vL + 1}",
                          f"v_mov_b32 v{vL + 1}, v{vL}",
                          f"v_permlane32_swap_b32 v{vL}, v{vL + 1}",
                          f"v_add_f32 v{vL}, v{vL}, v{vL + 1}")
                        tail = [[I(f"ds_write_b32 v{vExPar}, v{vL}")]]
                    for g in spread:
                        e(*g)
                    e("s_waitcnt lgkmcnt(0)")
                    wr = self.p_writes(i)
                    fl = []
                    for k in range(4):
                        fl += [wr[k] + (tail[0] if tail and k == 0 else []), sum(reads[4 * k:4 * k + 4], [])]
                    e(*interleave(mf, fl))
                    for g in late:
                        e(*g)
            else:
                e(*self.weave(mf, front, reads, spread, late))
            if t != 36:
                for g in self.dma_at(t, "m"):
                    e(*g)
            if (kind, i) == ("k", 0):
                self.g1_publish(False)
            if (kind, i) == ("wo", 0):
                self.g1_publish(True)
            self.deferred(t)
            if t in (33, 34):
                e("; exponentials against the lane-local maximum")
                for g in self.early_exp(t - 33):
                    e(*g)
            if t == 35:
                e("; last score tile and row maximum")
                e("s_waitcnt lgkmcnt(0)")
                mf = self.mfmas(t)
                e(*mf[:2])
                e(*interleave(mf[2:], self.early_exp(2)))
                e(*self.max_ops(3, [vT0, vT1]))
                e(f"v_max3_f32 v{vT0}, v{vT0}, v{vMC}, v{vMC + 2}",
                  f"v_max_f32 v{vT0}, v{vT0}, v{vMC + 4}",
                  f"v_mov_b32 v{vT1}, v{vT0}",
                  f"v_permlane32_swap_b32 v{vT0}, v{vT1}",
                  f"v_max_f32 v{vT0}, v{vT0}, v{vT1}",
                  f"ds_write_b32 v{vExOwn}, v{vT0} offset:16384")
            for g in self.dma_at(t, "b"):
                e(*g)
        assert self.issued == len(TILES)
        self.last_slice()
        if c["fused"]:
            self.fused_reduce()
        self.finish()

    def last_slice(self):
        e = self.e
        e("s_waitcnt lgkmcnt(0)")
        e(*self.mfmas(63))
        self.g1_publish(True)
        self.sync(67, 60)
        self.stamp()
        self.b2_reads("wo")

        def reads(n):
            g = []
            for k in range(4):
                f = aF + 16 * (n % 3) + 4 * k
                for h in range(2):
                    g.append([self.wo_read(f + 2 * h, n, k, h)])
            return g

        def stores(n):
            g = []
            for hf in range(2):
                u = 2 * n + hf
                d = vP + 4 * u
                cv = [I(f"v_cvt_pk_bf16_f32 v{d + x}, v{vS + 16 * n + 8 * hf + 2 * x}, v{vS + 16 * n + 8 * hf + 2 * x + 1}") for x in range(4)]
                g.append(cv[:2])
                grp = cv[2:]
                if u % 4 == 0:
                    grp.append(I(f"s_mov_b32 s{sSOFF}, {u * 1024}"))
                if self.c["thr"] and u >= self.c["thr"]:
                    grp.append(I(f"s_waitcnt vmcnt({self.c['thr'] - 1})"))
                grp.append(I(f"buffer_store_dwordx4 {rng('v', d, 4)}, v{vSt}, {srd(S_WS)}, s{sSOFF} offen offset:{(u % 4) * 1024} {self.c['aux_st']}"))
                g.append(grp)
            return g

        for g in reads(0):
            e(*g)
        for n in range(7):
            nxt = reads(n + 1) if n < 6 else []
            for g in nxt[:2]:
                e(*g)
            e(f"s_waitcnt lgkmcnt({len(nxt[:2])})")
            dd = rng('v', vS + 16 * n, 16)
            mf = [I(f"v_mfma_f32_32x32x16_bf16 {dd}, {rng('a', aF + 16 * (n % 3) + 4 * k, 4)}, {rng('a', aB2 + 4 * k, 4)}, {dd}") for k in range(4)]
            st = stores(n - 1) if n > 0 else []
            e(*interleave(mf[:2], nxt[2:]))
            e(*interleave(mf[2:], st))
        for g in stores(6):
            e(*g)
        self.stamp()

    def fused_reduce(self):
        e = self.e
        c = self.c
        x = self.sfx
        e(f"s_lshl_b32 s3, s{sBR}, 3", f"s_add_u32 s3, s3, s{sB}",
          f"s_lshl_b32 s4, s{sH}, 2", f"s_add_u32 s4, s4, s{sW}",
          f"s_mul_i32 s5, s3, {16 * 57344}",
          f"s_add_u32 s{S_K}, s{sWSP}, s5", f"s_addc_u32 s{S_K + 1}, s{sWSP + 1}, 0",
          f"s_mov_b32 s{S_K + 2}, {16 * 57344}",
          f"s_mov_b32 s{S_V}, s{sOUT}", f"s_mov_b32 s{S_V + 1}, s{sOUT + 1}", f"s_mov_b32 s{S_V + 2}, 917504",
          "v_mbcnt_lo_u32_b32 v0, -1, 0", "v_mbcnt_hi_u32_b32 v0, -1, v0",
          "s_lshl_b32 s5, s4, 10", "v_lshl_add_u32 v1, v0, 4, s5",
          "s_mul_hi_u32 s5, s4, 0x12492493",
          "s_mul_i32 s6, s5, 14", "s_sub_u32 s6, s4, s6",
          "s_and_b32 s7, s5, 1", "s_lshr_b32 s5, s5, 1",
          f"s_lshl_b32 s{sT0}, s{sB}, 6", "s_lshl_b32 s7, s7, 5", f"s_add_u32 s{sT0}, s{sT0}, s7",
          f"s_mul_i32 s{sT0}, s{sT0}, 1792",
          f"s_mul_i32 s7, s{sBR}, 896", f"s_add_u32 s{sT0}, s{sT0}, s7",
          "s_mul_i32 s5, s5, 448", f"s_add_u32 s{sT0}, s{sT0}, s5",
          "s_lshl_b32 s6, s6, 5", f"s_add_u32 s{sT0}, s{sT0}, s6",
          "v_and_b32 v2, 31, v0", "v_mul_u32_u24 v2, 1792, v2",
          "v_lshrrev_b32 v3, 5, v0", "v_lshl_add_u32 v2, v3, 4, v2",
          f"v_add_u32 v2, s{sT0}, v2",
          "v_and_b32 v3, 15, v0", "v_lshlrev_b32 v3, 2, v3",
          f"s_lshl_b32 s5, s{sH}, 2", f"s_cmp_eq_u32 s{sW}, 0", f"s_cselect_b32 s5, s5, 0x{OOB:x}",
          "v_lshl_add_u32 v4, v0, 6, s5",
          "v_mov_b32 v5, 1",
          f"v_readfirstlane_b32 s6, v{vRdy}",
          f"s_mov_b32 s7, {SPIN_MAX}",
          "s_cmp_eq_u32 s6, 1", f"s_cbranch_scc1 L_ready{x}",
          f"L_rdy_spin{x}:",
          f"buffer_load_dword v{vRdy}, off, {srd(S_DBG)}, 0 sc1",
          "s_waitcnt vmcnt(0)",
          f"v_readfirstlane_b32 s6, v{vRdy}",
          "s_sub_u32 s7, s7, 1", "s_cmp_eq_u32 s7, 0", f"s_cbranch_scc1 L_ready{x}",
          "s_cmp_eq_u32 s6, 1", f"s_cbranch_scc0 L_rdy_spin{x}",
          f"L_ready{x}:",
          "s_waitcnt vmcnt(0)")
        self.stamp()
        e("s_barrier",
          f"buffer_store_dword v5, v4, {srd(S_FL)}, 0 offen sc1",
          f"s_cmp_ge_u32 s{sH}, 14", f"s_cbranch_scc1 L_fin{x}",
          f"s_mov_b32 s7, {SPIN_MAX}",
          f"L_poll{x}:",
          f"buffer_load_dword v6, v3, {srd(S_FL)}, 0 offen sc1",
          "s_waitcnt vmcnt(0)",
          "v_cmp_ne_u32 vcc, 1, v6",
          "s_nop 1",
          f"s_cbranch_vccz L_go{x}")
        if c["sleep"]:
            e(f"s_sleep {c['sleep']}")
        e("s_sub_u32 s7, s7, 1", "s_cmp_eq_u32 s7, 0", f"s_cbranch_scc0 L_poll{x}",
          f"L_go{x}:",
          f"s_mov_b32 s{sSOFF}, 0")
        for h in range(16):
            e(f"buffer_load_dwordx4 {rng('v', 64 + 4 * h, 4)}, v1, {srd(S_K)}, s{sSOFF} offen {c['aux_rd']}")
            if h < 15:
                e(f"s_add_u32 s{sSOFF}, s{sSOFF}, 57344")
        e("s_mov_b32 s4, 0x00003f80", "s_mov_b32 s5, 0x3f800000")
        for h in range(16):
            e(f"s_waitcnt vmcnt({15 - h})")
            for k in range(4):
                src = 64 + 4 * h + k
                for hi in range(2):
                    a = 48 + 2 * k + hi
                    e(f"v_dot2_f32_bf16 v{a}, v{src}, s{4 + hi}, {'0' if h == 0 else 'v%d' % a}")
        for k in range(4):
            e(f"v_cvt_pk_bf16_f32 v{44 + k}, v{48 + 2 * k}, v{49 + 2 * k}")
        e(f"buffer_store_dwordx4 v[44:47], v2, {srd(S_V)}, 0 offen {c['aux_out']}")
        e(f"L_fin{x}:")

    def finish(self):
        e = self.e
        if self.c["stamps"]:
            e("s_waitcnt vmcnt(0)")
            while self.nstamp < 10:
                self.stamp()
            e("s_waitcnt lgkmcnt(0)",
              "s_lshl_b32 s6, s2, 2", f"s_add_u32 s6, s6, s{sW}", "s_lshl_b32 s6, s6, 7",
              "s_add_u32 s6, s6, 0x1000000",
              f"s_add_u32 s{S_WS}, s{sWSP}, s6", f"s_addc_u32 s{S_WS + 1}, s{sWSP + 1}, 0",
              f"s_mov_b32 s{S_WS + 2}, 128",
              "v_mov_b32 v0, 0")
            if self.c["stamps"] == 2:
                e(f"v_writelane_b32 v{vT3}, s98, 60", "s_memtime s[96:97]", "s_waitcnt lgkmcnt(0)",
                  "v_mov_b32 v2, s96", "v_mov_b32 v3, s100",
                  f"buffer_store_dwordx2 v[2:3], v0, {srd(S_WS)}, 0 offen offset:120",
                  "s_lshl_b32 s7, s2, 2", f"s_add_u32 s7, s7, s{sW}", "s_lshl_b32 s7, s7, 9",
                  "s_add_u32 s7, s7, 0x1100000",
                  f"s_add_u32 s{S_X}, s{sWSP}, s7", f"s_addc_u32 s{S_X + 1}, s{sWSP + 1}, 0", f"s_mov_b32 s{S_X + 2}, 512",
                  "v_mbcnt_lo_u32_b32 v4, -1, 0", "v_mbcnt_hi_u32_b32 v4, -1, v4", "v_lshlrev_b32 v4, 2, v4",
                  f"buffer_store_dword v{vT2}, v4, {srd(S_X)}, 0 offen",
                  f"buffer_store_dword v{vT3}, v4, {srd(S_X)}, 0 offen offset:256")
            for k in range(10):
                r = sSTAMP + 2 * k
                e(f"v_mov_b32 v2, s{r}", f"v_mov_b32 v3, s{r + 1}",
                  f"buffer_store_dwordx2 v[2:3], v0, {srd(S_WS)}, 0 offen offset:{8 * k}")
        e("s_endpgm")

    def main(self):
        self.prologue()
        if self.c["aux_kva"] == "same":
            self.body()
        else:
            saved = (self.issued, self.nstamp, list(self.vm))
            self.e(f"s_cmp_eq_u32 s{sBR}, 0", "s_cbranch_scc1 L_branch_a")
            self.body()
            self.issued, self.nstamp, self.vm = saved
            self.sfx = "_a"
            self.kv_aux = self.c["aux_kva"]
            self.e(".p2align 6", "L_branch_a:")
            self.body()
        self.e("L_main_end:", "s_endpgm")

    def reduce_kernel(self):
        e = self.e
        c = self.c
        e("s_cmp_ge_u32 s2, 224", "s_cbranch_scc1 L_red_end")
        e("s_load_dwordx2 s[4:5], s[0:1], 80", "s_load_dwordx2 s[6:7], s[0:1], 96")
        e("v_lshrrev_b32 v1, 6, v0", "v_and_b32 v0, 63, v0", "v_readfirstlane_b32 s16, v1")
        e("s_mul_hi_u32 s17, s2, 0x12492493",
          "s_mul_i32 s18, s17, 14",
          "s_sub_u32 s18, s2, s18",
          "s_lshl_b32 s18, s18, 2",
          "s_add_u32 s18, s18, s16",
          f"s_mul_i32 s19, s17, {16 * 57344}",
          "s_lshl_b32 s20, s18, 10",
          "v_lshl_add_u32 v1, v0, 4, s20",
          "s_waitcnt lgkmcnt(0)",
          "s_add_u32 s8, s6, s19", "s_addc_u32 s9, s7, 0",
          f"s_mov_b32 s10, {16 * 57344}", "s_mov_b32 s11, 0x00020000",
          "s_mov_b32 s21, 0")
        for h in range(16):
            e(f"buffer_load_dwordx4 {rng('v', 16 + 4 * h, 4)}, v1, s[8:11], s21 offen {c['aux_rd']}")
            if h < 15:
                e("s_add_u32 s21, s21, 57344")
        e("s_mov_b32 s12, s4", "s_mov_b32 s13, s5", "s_mov_b32 s14, 917504", "s_mov_b32 s15, 0x00020000")
        e("s_mul_hi_u32 s22, s18, 0x12492493",
          "s_mul_i32 s23, s22, 14",
          "s_sub_u32 s23, s18, s23",
          "s_and_b32 s24, s22, 1",
          "s_lshr_b32 s25, s22, 1",
          "s_and_b32 s26, s17, 7",
          "s_lshr_b32 s27, s17, 3",
          "s_lshl_b32 s26, s26, 6", "s_lshl_b32 s24, s24, 5", "s_add_u32 s26, s26, s24",
          "s_mul_i32 s26, s26, 1792",
          "s_mul_i32 s27, s27, 896", "s_add_u32 s26, s26, s27",
          "s_mul_i32 s25, s25, 448", "s_add_u32 s26, s26, s25",
          "s_lshl_b32 s23, s23, 5", "s_add_u32 s26, s26, s23",
          "v_and_b32 v2, 31, v0", "v_mul_u32_u24 v2, 1792, v2",
          "v_lshrrev_b32 v3, 5, v0", "v_lshl_add_u32 v2, v3, 4, v2",
          "v_add_u32 v2, s26, v2",
          "s_mov_b32 s28, 0x00003f80", "s_mov_b32 s29, 0x3f800000")
        for h in range(16):
            e(f"s_waitcnt vmcnt({15 - h})")
            for x in range(4):
                src = 16 + 4 * h + x
                for hi in range(2):
                    a = 8 + 2 * x + hi
                    e(f"v_dot2_f32_bf16 v{a}, v{src}, s{28 + hi}, {'0' if h == 0 else 'v%d' % a}")
        for x in range(4):
            e(f"v_cvt_pk_bf16_f32 v{4 + x}, v{8 + 2 * x}, v{9 + 2 * x}")
        e("buffer_store_dwordx4 v[4:7], v2, s[12:15], 0 offen")
        e("L_red_end:", "s_endpgm")


HEADER = """; Fused Q-projection / attention / output-projection for both branches, then a cross-head reduce.
; Kernarg: A_x A_k A_v A_wq A_wo B_x B_k B_v B_wq B_wo out debug ws (8-byte pointers).
{launch}.amdgcn_target "amdgcn-amd-amdhsa--gfx950"
.text
"""

KD = """.amdhsa_kernel {label}
  .amdhsa_next_free_vgpr {vgpr}
  .amdhsa_next_free_sgpr 102
  .amdhsa_accum_offset {acc}
  .amdhsa_group_segment_fixed_size 0
  .amdhsa_kernarg_size 104
  .amdhsa_user_sgpr_count 2
  .amdhsa_user_sgpr_kernarg_segment_ptr 1
  .amdhsa_system_sgpr_workgroup_id_x 1
  .amdhsa_float_denorm_mode_32 3
.end_amdhsa_kernel
"""


def entry(label):
    return f".globl {label}\n.p2align 8\n.type {label},@function\n{label}:\n"


def build(cfg):
    g = Gen(cfg)
    g.main()
    main = render(pad_hazards(g.o))
    if cfg["fused"]:
        launch = "; @launch grid=(256,1,1) block=(256,1,1) lds=163840\n"
    else:
        launch = (f"; @launch kernel={NAME}_kernel grid=(256,1,1) block=(256,1,1) lds=163840\n"
                  "; @launch kernel=reduce_heads_kernel grid=(224,1,1) block=(256,1,1) lds=0\n")
    s = HEADER.format(launch=launch)
    s += entry(NAME + "_kernel") + main
    if not cfg["fused"]:
        r = Gen(cfg)
        r.reduce_kernel()
        s += entry("reduce_heads_kernel") + render(pad_hazards(r.o))
    s += '.section .rodata,"a"\n.p2align 6\n'
    s += KD.format(label=NAME + "_kernel", vgpr=448, acc=256)
    if not cfg["fused"]:
        s += ".p2align 6\n" + KD.format(label="reduce_heads_kernel", vgpr=80, acc=80)
    return s


if __name__ == "__main__":
    ap = argparse.ArgumentParser()
    ap.add_argument("-o", default="cdna_kernels/" + NAME + ".s")
    ap.add_argument("opts", nargs="*")
    a = ap.parse_args()
    cfg = dict(DEFAULTS)
    for o in a.opts:
        k, v = o.split("=", 1)
        assert k in cfg, k
        cfg[k] = type(cfg[k])(v.replace("+", " "))
    open(a.o, "w").write(build(cfg))
    print("wrote", a.o, json.dumps(cfg), file=sys.stderr)
```

```python
import re

TRANS = ("v_exp_f32", "v_rcp_f32", "v_log_f32", "v_rsq_f32", "v_sqrt_f32")


def regs_of(op):
    op = op.strip().lstrip("-")
    m = re.fullmatch(r"([vas])\[(\d+):(\d+)\]", op)
    if m:
        return [(m.group(1), i) for i in range(int(m.group(2)), int(m.group(3)) + 1)]
    m = re.fullmatch(r"([vas])(\d+)", op)
    if m:
        return [(m.group(1), int(m.group(2)))]
    if op == "m0":
        return [("m", 0)]
    if op == "vcc":
        return [("s", 106), ("s", 107)]
    if op == "vcc_lo":
        return [("s", 106)]
    if op == "exec":
        return [("s", 126), ("s", 127)]
    return []


def rng(kind, base, n):
    return f"{kind}{base}" if n == 1 else f"{kind}[{base}:{base + n - 1}]"


class Ins:
    def __init__(self, text, kind, reads=(), writes=(), **kw):
        self.text = text
        self.kind = kind
        self.reads = set(reads)
        self.writes = set(writes)
        self.__dict__.update(kw)

    def states(self):
        if self.kind in ("label", "comment"):
            return 0
        if self.kind == "nop":
            return self.n
        return 1


def _split(ops):
    return [o.strip() for o in ops.split(",")]


def I(text):
    text = text.strip()
    if text.endswith(":"):
        return Ins(text, "label")
    if text.startswith(";") or text.startswith("."):
        return Ins(text, "comment")
    parts = text.split(None, 1)
    mn = parts[0]
    rest = parts[1] if len(parts) > 1 else ""
    if mn == "s_nop":
        return Ins(text, "nop", n=int(rest) + 1)
    if mn in ("s_waitcnt", "s_barrier", "s_endpgm", "s_setprio", "s_sleep", "s_branch", "s_set_gpr_idx_on", "s_set_gpr_idx_off") or mn.startswith("s_cbranch"):
        return Ins(text, "ctl")
    if mn.startswith("v_mfma"):
        d, a, b, c = _split(rest)
        passes = 8 if "32x32x16" in mn else 4
        return Ins(text, "mfma", regs_of(a) + regs_of(b) + regs_of(c), regs_of(d),
                   ab=set(regs_of(a) + regs_of(b)), c=regs_of(c), d=regs_of(d), passes=passes)
    if mn.startswith("ds_read"):
        o = _split(rest)
        return Ins(text, "ds", regs_of(o[1].split()[0]), regs_of(o[0]), load=True)
    if mn.startswith("ds_write"):
        o = _split(rest)
        return Ins(text, "ds", regs_of(o[0]) + regs_of(o[1].split()[0]), [], load=False)
    if mn.startswith("buffer_load"):
        o = _split(rest)
        if " lds" in text:
            r = regs_of(o[0]) + regs_of(o[1]) + regs_of(o[2].split()[0]) + [("m", 0)]
            return Ins(text, "vmem", r, [], dma=True, load=True)
        r = regs_of(o[1]) + regs_of(o[2]) + regs_of(o[3].split()[0])
        return Ins(text, "vmem", r, regs_of(o[0]), dma=False, load=True)
    if mn.startswith("global_load"):
        o = _split(rest)
        return Ins(text, "vmem", regs_of(o[1]), regs_of(o[0]), dma=False, load=True)
    if mn.startswith("buffer_store") or mn.startswith("buffer_atomic"):
        o = _split(rest)
        r = regs_of(o[0]) + regs_of(o[1]) + regs_of(o[2]) + regs_of(o[3].split()[0])
        wide = set(regs_of(o[0])) if ("x4" in mn or "x3" in mn) else set()
        return Ins(text, "vmem", r, [], dma=False, load=False, wide=wide)
    if mn.startswith("buffer_"):
        return Ins(text, "ctl")
    if mn.startswith("s_load") or mn.startswith("s_memtime") or mn.startswith("s_memrealtime"):
        o = _split(rest)
        return Ins(text, "smem", sum((regs_of(x) for x in o[1:]), []), regs_of(o[0]))
    if mn.startswith("s_cmp") or mn.startswith("s_bitcmp"):
        o = _split(rest)
        return Ins(text, "salu", sum((regs_of(x) for x in o), []), [])
    if mn.startswith("s_"):
        o = _split(rest)
        return Ins(text, "salu", sum((regs_of(x) for x in o[1:]), []), regs_of(o[0]))
    if mn.startswith("v_"):
        rest = re.split(r"\s+(?:op_sel|neg_lo|neg_hi)", rest)[0]
        o = _split(rest)
        o = [x.split()[0] if x else x for x in o]
        w = regs_of(o[0])
        r = sum((regs_of(x) for x in o[1:]), [])
        if mn.startswith("v_permlane"):
            r += regs_of(o[0])
            w += regs_of(o[1])
        if mn.startswith("v_add_co") or mn.startswith("v_addc_co"):
            w += regs_of(o[1])
            r = sum((regs_of(x) for x in o[2:]), [])
        if mn.startswith("v_fmac") or mn.startswith("v_dot2c"):
            r += regs_of(o[0])
        return Ins(text, "valu", r, w, mn=mn, trans=any(mn.startswith(t) for t in TRANS),
                   dot=mn.startswith("v_dot"))
    raise ValueError("unparsed instruction: " + text)


XDL_RAW = {4: 8, 8: 12}
XDL_C_OVERLAP = {4: 6, 8: 10}
XDL_C_WAR = {4: 3, 8: 7}


def required_gap(p, c):
    need = 0
    if p.kind == "valu":
        vw = {r for r in p.writes if r[0] in "va"}
        sw = {r for r in p.writes if r[0] == "s"}
        if c.kind == "mfma" and vw & c.reads:
            need = max(need, 3 if p.dot else 2)
        if c.kind == "mfma" and p.mn.startswith("v_pk_") and "op_sel" in p.text:
            need = max(need, 2)
        if c.kind == "valu":
            if c.mn.startswith("v_permlane") and vw & c.reads:
                need = max(need, 2)
            if (c.mn.startswith("v_readfirstlane") or c.mn.startswith("v_readlane")) and vw & c.reads:
                need = max(need, 1)
            if p.trans and not c.trans and vw & c.reads:
                need = max(need, 1)
            if sw & c.reads:
                need = max(need, 2)
            if p.dot and vw & (c.reads | c.writes):
                same_acc = c.dot and c.mn == p.mn and c.writes == p.writes
                if not same_acc:
                    need = max(need, 3)
        if c.kind in ("vmem", "ds") and p.dot and vw & c.reads:
            need = max(need, 3)
        if c.kind == "vmem" and sw & c.reads:
            need = max(need, 5)
        if c.kind == "salu" and sw & c.reads:
            need = max(need, 1)
    if p.kind == "mfma":
        d = set(p.d)
        if c.kind == "mfma":
            if d & c.ab:
                need = max(need, XDL_RAW[p.passes])
            if d & set(c.c) and (c.c != p.d or c.passes != p.passes):
                need = max(need, XDL_C_OVERLAP[p.passes])
        elif c.kind in ("valu", "ds", "vmem"):
            if d & (c.reads | c.writes):
                need = max(need, XDL_RAW[p.passes])
            if c.kind == "valu" and set(p.c) & c.writes:
                need = max(need, XDL_C_WAR[p.passes])
    if p.kind == "salu" and ("m", 0) in p.writes and c.kind == "vmem" and getattr(c, "dma", False):
        need = max(need, 1)
    if p.kind == "vmem" and getattr(p, "wide", None) and p.wide & c.writes:
        need = max(need, 2)
    return need


def pad_hazards(ins, window=24):
    out = []
    for c in ins:
        if c.kind not in ("label", "comment", "nop", "ctl"):
            dist = 0
            pad = 0
            for p in reversed(out):
                if dist >= window:
                    break
                need = required_gap(p, c) if p.kind not in ("label", "comment", "nop", "ctl") else 0
                pad = max(pad, need - dist)
                dist += p.states()
            while pad > 0:
                n = min(pad, 16)
                out.append(I(f"s_nop {n - 1}"))
                pad -= n
        out.append(c)
    return out


def render(ins):
    lines = []
    for i in ins:
        lines.append(i.text if i.kind == "label" or i.text.startswith(".") else "    " + i.text)
    return "\n".join(lines) + "\n"


def interleave(mfmas, fillers, first=0):
    out = []
    fillers = list(fillers)
    for g in fillers[:first]:
        out += g
    fillers = fillers[first:]
    n = len(mfmas)
    if n == 0:
        for g in fillers:
            out += g
        return out
    k = 0
    for i, m in enumerate(mfmas):
        out.append(m)
        left = n - i
        take = -(-(len(fillers) - k) // left)
        for g in fillers[k:k + take]:
            out += g
        k += take
    return out
```

```python
import argparse
import json
import math
import struct
import sys

from asmdsl import I, interleave, pad_hazards, render, rng

NAME = "concat_heads__gqa_block_cached__mha_block_cached__near_ridge"

DEFAULTS = dict(
    ks="5l,5l,5l,4m",
    vs="5l,5l,5l,4l",
    qs="4m,4l,4s,4f",
    os="4m,4l,4s,4f",
    over="8:5m/9:6b/10:6b/11:6b/12:3l/36:3l/37:3m/38:3l/39:4b/40:4m/41:4l/42:4f/43:5l/44:6b/45:6s/46:6b/47:6l/48:3l/49:3f",
    pre=7,
    rpg=2,
    dgap=3,
    kbar=0,
    aux_x="", aux_w="", aux_kv="nt", aux_st="sc1", aux_rd="sc1", aux_out="",
    rot=1, wsw=1, xrot=0, touch3=0,
    wflag=0,
    keep=0,
    chain=1,
    ilv="",
    early="",
    xsplit=0,
    ochain=1,
    wgmap=0,
    numa=0,
    ppub=0,
    nolag=0,
    omap=1,
    onepoll=1,
    ppoll=0,
    sleep=3,
    eg=0,
    cpf=2,
    cntst=0,
    rdy="11,27,50",
    stamps=0,
    abl="",
)

EX = 131072
LSUM = 28672
OOB = 0x80000000
FLAGS = 0xE00000
SPIN_MAX = 65536

S_X, S_K, S_V, S_WQ, S_WO, S_WS, S_FL = 8, 12, 16, 20, 24, 28, 32
S_DBG = S_X
sW, sBR, sB, sH, sWSW, sT0, sT1, sT2, sSOFF, sM4096, sM1024, sHP = range(58, 70)
sC = 70
sWQP, sWOP, sKP = 74, 76, 78
sSL, sWOJ = 80, 84
sKVOFF = 88
sOUT, sDBGP, sWSP = 92, 94, 56
sSTAMP = 36

vWqD, vKD, vVD, vWoD = 1, 2, 4, 5
vWqR, vKR, vVR, vWoR = 12, 13, 15, 19
vExOwn, vQW, vOW, vExQ, vExOb, vSt, vRdy = 23, 27, 28, 29, 30, 31, 36
vRL, vLead, vT2, vT3 = 32, 37, 38, 39
vCV, vG1, vP, vS = 40, 48, 64, 128
vQ = 64
vMC, vM, vL, vSUM, vT = 112, 124, 40, 48, 56
vRed, vSq = 1, 2
aX, aPP, aB2, aF = 0, 0, 192, 224


def srd(n):
    return f"s[{n}:{n + 3}]"


def pair(n):
    return f"v[{n}:{n + 1}]"


def bcast(reg, nsrc):
    k = reg & 1
    lo = ",".join(["0"] * (nsrc - 1) + [str(k)])
    hi = ",".join(["1"] * (nsrc - 1) + [str(k)])
    return pair(reg & ~1), f"op_sel:[{lo}] op_sel_hi:[{hi}]"


def tile_list():
    t = [("x", 0, i) for i in range(4)]
    for j in range(4):
        t += [("wq", j, i) for i in range(4)] + [("k", j, i) for i in range(4)]
    for j in range(4):
        t += [("v", j, i) for i in range(4)] + [("wo", j, i) for i in range(4)]
    return t


TILES = tile_list()


def default_spec(cfg, kind, i):
    return cfg[{"k": "ks", "v": "vs", "wq": "qs", "wo": "os"}[kind]].split(",")[i]


class Gen:
    def __init__(self, cfg):
        self.c = cfg
        self.o = []
        self.issued = 0
        self.nstamp = 0
        self.vm = []
        self.sched = self.make_sched(cfg)

    def e(self, *lines):
        for ln in lines:
            ins = I(ln) if isinstance(ln, str) else ln
            if ins.kind == "vmem" and (ins.load or self.c["cntst"]):
                self.vm.append(getattr(ins, "tag", None))
            self.o.append(ins)

    def eg(self, groups):
        for g in groups:
            self.e(*g)

    def stamp(self):
        if self.c["stamps"] and self.nstamp < 10:
            r = sSTAMP + 2 * self.nstamp
            self.e(f"s_memrealtime s[{r}:{r + 1}]")
            self.nstamp += 1

    def has_barrier(self, t):
        kind, _, i = TILES[t]
        if kind == "k":
            return i == 1 or self.c["kbar"]
        if kind == "wo":
            return i == 1 or t == 40 if self.c["ochain"] else i != 3
        return True

    def cover(self, t):
        kind, _, i = TILES[t]
        if kind == "wo" and self.c["ochain"]:
            return t - 1 if i == 0 else t - i + 3
        return t + 1 if kind == "wo" and i % 2 == 0 else t

    def slot_free(self, u, t):
        if u < 8:
            return True
        prev = u - 8
        kind, _, i = TILES[prev]
        if kind == "x":
            return i < 2 or t >= 4
        last_reader = prev + 1 if kind == "wo" and i % 2 == 0 else prev
        if kind == "wo" and self.c["ochain"]:
            last_reader = prev - i + 3
        if kind == "k" and TILES[u][0] == "k":
            return last_reader < t
        return any(self.has_barrier(b) for b in range(last_reader + 1, t + 1))

    def make_sched(self, cfg):
        order = "fslmb"
        over = dict(p.split(":") for p in cfg["over"].split("/") if p)
        sched = {}
        last = (3, 0)
        for u in range(cfg["pre"] + 1, len(TILES)):
            kind, _, i = TILES[u]
            spec = over.get(str(u)) or default_spec(cfg, kind, i)
            at = (min(63, u - int(spec[:-1])), order.index(spec[-1]))
            while not self.slot_free(u, at[0]):
                at = (at[0] + 1, 0)
            at = max(at, last)
            assert at[0] < u - 1
            assert not (cfg["ochain"] and kind == "wo") or at[0] <= u - i
            last = at
            sched.setdefault(at[0], {}).setdefault(order[at[1]], []).append(u)
        return sched

    def dma_at(self, t, pos):
        g = []
        for u in self.sched.get(t, {}).get(pos, []):
            assert u == self.issued
            g += self.dma_groups(u)
            self.issued += 1
        return g

    def younger(self, tag):
        last = max(k for k, x in enumerate(self.vm) if x == tag)
        return len(self.vm) - 1 - last

    def sync(self, t, slot=None, upto=None, barrier=None):
        slot = t - 4 if slot is None else slot
        upto = self.cover(t) if upto is None else upto
        barrier = self.has_barrier(t) if barrier is None else barrier
        fine = self.c["stamps"] == 2 and slot >= 0
        if fine:
            self.e("s_memtime s[96:97]")
        self.e(f"s_waitcnt vmcnt({self.younger(upto)}) lgkmcnt(0)")
        if fine:
            self.e(f"v_writelane_b32 v{vT2}, s96, {slot}")
            if slot > 0:
                self.e(f"v_writelane_b32 v{vT3}, s98, {slot - 1}")
        if barrier:
            self.e("s_barrier")
        if fine:
            self.e("s_memtime s[98:99]")

    def make_srd(self, dst, pa, pb, off, nrec):
        self.e(f"s_cmp_eq_u32 s{sBR}, 0",
               f"s_cselect_b32 s{dst}, s{pa}, s{pb}",
               f"s_cselect_b32 s{dst + 1}, s{pa + 1}, s{pb + 1}",
               f"s_add_u32 s{dst}, s{dst}, s{off}",
               f"s_addc_u32 s{dst + 1}, s{dst + 1}, 0",
               f"s_mov_b32 s{dst + 2}, {nrec}",
               f"s_mov_b32 s{dst + 3}, 0x00020000")

    def x_dma(self, n):
        i, u = divmod(n, 4)
        base = (EX if i < 2 else 0) + i * 16384
        if self.c["xrot"]:
            if u == 0:
                g = [f"s_add_u32 s6, s7, {i}", "s_and_b32 s6, s6, 3",
                     f"s_mul_i32 s{sSOFF}, s6, {16 * 896}",
                     "s_cmp_lt_u32 s6, 2", f"s_cselect_b32 s5, {EX}, 0",
                     "s_lshl_b32 s6, s6, 14", f"s_add_u32 s5, s5, s{sT2}", "s_add_u32 m0, s5, s6"]
            else:
                g = ["s_add_u32 m0, m0, 32"]
        else:
            g = [f"s_add_u32 m0, s{sT2}, {base + 32 * u}"]
            if u == 0:
                g.append(f"s_mov_b32 s{sSOFF}, {i * 16 * 896}")
        ld = I(f"buffer_load_dwordx4 v41, {srd(S_X)}, s{sSOFF} offen offset:{896 * u} {self.c['aux_x']} lds")
        ld.tag = i
        return g + [ld]

    def prologue(self):
        c = self.c
        e = self.e
        e("s_cmp_ge_u32 s2, 256", "s_cbranch_scc1 L_main_end")
        e("s_load_dwordx16 s[36:51], s[0:1], 0",
          "s_load_dwordx4 s[52:55], s[0:1], 64",
          f"s_load_dwordx4 s[{sOUT}:{sOUT + 3}], s[0:1], 80",
          f"s_load_dwordx2 s[{sWSP}:{sWSP + 1}], s[0:1], 96")
        if c["stamps"]:
            e("s_memrealtime s[98:99]", "s_memtime s[100:101]")
        e("v_lshrrev_b32 v40, 6, v0", "v_and_b32 v0, 63, v0", f"v_readfirstlane_b32 s{sW}, v40")
        if c["wgmap"] == 1:
            e(f"s_and_b32 s{sBR}, s2, 1",
              "s_and_b32 s3, s2, 6", "s_bfe_u32 s4, s2, 0x10004", "s_or_b32 s3, s3, s4",
              f"s_lshr_b32 s{sB}, s2, 5")
        elif c["wgmap"] == 2:
            e("s_and_b32 s3, s2, 7",
              f"s_bfe_u32 s{sBR}, s2, 0x10004",
              f"s_lshr_b32 s{sB}, s2, 5")
        elif c["wgmap"] == 3:
            e("s_and_b32 s3, s2, 7",
              f"s_lshr_b32 s{sBR}, s2, 7", f"s_xor_b32 s{sBR}, s{sBR}, 1",
              f"s_bfe_u32 s{sB}, s2, 0x30004")
        else:
            e("s_and_b32 s3, s2, 7",
              f"s_lshr_b32 s{sBR}, s2, 7",
              f"s_bfe_u32 s{sB}, s2, 0x30004")
        e(f"s_bfe_u32 s{sHP}, s2, 0x10003",
          f"s_mul_i32 s{sT0}, s{sW}, {4 * 896}",
          f"v_lshl_add_u32 v41, v0, 4, s{sT0}",
          f"s_mul_i32 s{sT1}, s{sB}, 57344",
          f"s_mul_i32 s{sT2}, s{sW}, {4 * 928}",
          f"s_lshl1_add_u32 s{sH}, s3, s{sHP}",
          f"s_lshl_b32 s{sT0}, s{sH}, 9")
        if c["cpf"]:
            n = c["cpf"]
            e("; read two lines of this kernel's code so that later instruction fetches hit L2")
            e("s_getpc_b64 s[4:5]", "L_pc_base:",
              "s_lshr_b32 s6, s2, 3", f"s_lshl2_add_u32 s6, s6, s{sW}",
              f"s_mul_i32 s6, s6, {n}",
              "v_add_u32 v42, s6, v0",
              "v_lshlrev_b32 v42, 7, v42",
              "v_min_u32 v42, L_main_end-L_pc_base, v42",
              "v_mov_b32 v43, s5",
              "v_add_co_u32 v42, vcc, s4, v42",
              "v_addc_co_u32 v43, vcc, 0, v43, vcc",
              f"s_mov_b64 exec, {(1 << n) - 1}",
              f"global_load_dword v{vRdy}, v[42:43], off",
              "s_mov_b64 exec, -1")
        if c["xrot"] == 1:
            e("s_mov_b32 s7, s3")
        if c["xrot"] == 2:
            e(f"s_lshl1_add_u32 s7, s{sHP}, s3")
        if c["xrot"] == 3:
            e("s_lshl_b32 s7, s3, 1")
        if c["touch3"]:
            e(f"s_mul_i32 s6, s{sB}, 56", f"s_mul_i32 s5, s{sW}, 14", "s_add_u32 s6, s6, s5",
              "s_lshl_b32 s6, s6, 13", "s_add_u32 s6, s6, 384",
              f"s_cmp_eq_u32 s{sHP}, 0", f"s_cselect_b32 s6, s6, 0x{OOB:x}",
              f"v_lshl_add_u32 v{vLead}, v0, 13, s6")
        e("s_waitcnt lgkmcnt(0)")
        self.make_srd(S_X, 36, 46, sT1, 57344)
        e("s_mov_b32 exec_hi, 0x00ffffff")
        ilv = [int(x) for x in c["ilv"].split(",")] if c["ilv"] else None
        nfirst = 4 * min(x for x in ilv + [4] if x <= 4) if ilv else 11
        for n in range(nfirst):
            e(*self.x_dma(n))
        e("s_mov_b32 exec_hi, -1")
        self.make_srd(S_WQ, 42, 52, sT0, 0)
        e(f"s_sub_u32 s{S_WQ + 2}, 3670016, s{sT0}")
        if c["touch3"]:
            e("s_mov_b64 exec, 0x3fff",
              f"buffer_load_dword v{vLead}, v{vLead}, {srd(S_WQ)}, 0 offen",
              "s_mov_b64 exec, -1")
        e(f"s_lshl_b32 s{sM4096}, s{sW}, 12",
          f"s_lshl_b32 s{sM1024}, s{sW}, 10")
        e(f"s_lshr_b32 s{sWSW}, s{sB}, 2" if c["wsw"] else f"s_mov_b32 s{sWSW}, 0")
        e(f"s_mul_i32 s{sWQP}, s{sWSW}, {224 * 8192}",
          f"s_sub_u32 s{sWQP + 1}, {224 * 8192}, s{sWQP}")
        e(*self.slice_setup(0))
        e("v_lshrrev_b32 v42, 3, v0",
          "v_and_b32 v43, 7, v0",
          "v_and_b32 v44, 2, v42",
          f"s_and_b32 s6, s{sW}, 1", "s_lshl_b32 s6, s6, 2",
          "v_xor_b32 v44, v44, v43",
          "v_xor_b32 v44, s6, v44",
          f"s_lshl_b32 s6, s{sW}, 16",
          "v_lshl_add_u32 v45, v42, 13, s6",
          f"v_lshl_add_u32 v{vWqD}, v44, 4, v45")
        if ilv:
            for u in ilv[:2]:
                self.start_tile(u)
        e(f"s_lshl4_add_u32 s6, s{sB}, s{sH}", f"s_lshl3_add_u32 s5, s{sB}, s3",
          f"s_cmp_eq_u32 s{sBR}, 0", "s_cselect_b32 s6, s5, s6",
          f"s_lshl_b32 s{sKVOFF}, s6, 18")
        self.make_srd(S_K, 38, 48, sKVOFF, 262144)
        e("v_and_b32 v45, 1, v42",
          "v_lshrrev_b32 v46, 1, v42")
        if c["numa"]:
            src = {1: "s3", 2: f"s{sB}", 3: "0"}[c["numa"]]
            e("v_and_b32 v47, 1, v46", "v_lshl_add_u32 v45, v47, 3, v45",
              "v_lshrrev_b32 v47, 2, v42", "v_lshl_add_u32 v45, v47, 8, v45",
              f"s_and_b32 s6, {src}, 1", f"s_lshl_b32 s{sKP}, s6, 13", f"s_xor_b32 s{sKP + 1}, s{sKP}, 0x2000")
        else:
            e("v_lshl_add_u32 v45, v46, 3, v45")
        e(f"s_lshl_b32 s6, s{sW}, 14",
          "v_lshl_add_u32 v45, v45, 9, s6",
          "v_and_b32 v44, 6, v42",
          "v_xor_b32 v44, v44, v43",
          f"v_lshl_add_u32 v{vVD}, v44, 4, v45",
          "v_xor_b32 v46, v46, v43",
          f"v_lshl_add_u32 v{vKD}, v46, 4, v45",
          f"v_xor_b32 v{vKD + 1}, 64, v{vKD}")
        e("v_lshrrev_b32 v51, 4, v0",
          "v_and_b32 v57, 15, v0",
          "v_mul_u32_u24 v57, 928, v57",
          "v_lshl_add_u32 v57, v51, 4, v57",
          f"s_mul_i32 s6, s{sWSW}, 448",
          "v_add_u32 v110, s6, v57",
          "s_sub_u32 s6, 448, s6",
          "v_add_u32 v111, s6, v57",
          f"v_add_u32 v108, {EX}, v110",
          f"v_add_u32 v109, {EX}, v111",
          "v_bfe_u32 v53, v0, 2, 2",
          "v_bfe_u32 v54, v0, 3, 2",
          f"v_xor_b32 v54, s{sW}, v54",
          "v_and_b32 v55, 3, v0",
          "v_lshl_add_u32 v54, v54, 2, v55",
          "v_lshl_add_u32 v56, v51, 3, v53",
          "v_lshl_add_u32 v56, v56, 4, v54",
          "v_lshlrev_b32 v56, 3, v56",
          f"v_add_u32 v{vWqR}, 0x10000, v56")
        if ilv:
            for u in ilv[2:]:
                self.start_tile(u)
            self.issued = max(ilv) + 1
        else:
            e("s_mov_b32 exec_hi, 0x00ffffff")
            for n in range(11, 16):
                e(*self.x_dma(n))
            e("s_mov_b32 exec_hi, -1")
            self.issued = 4
        blocks = [int(x) for x in c["early"].split(",") if x]
        setup = []
        for t in blocks:
            saved, self.o = self.o, []
            self.deferred(t, True)
            setup += self.o
            self.o = saved
        groups = []
        while self.issued <= c["pre"]:
            groups += self.dma_groups(self.issued)
            self.issued += 1
        cuts = [k for k in range(len(setup) + 1)
                if k == len(setup) or not any(setup[k].text.startswith(p) for p in ("s_cselect", "s_addc"))]
        done = 0
        for n, g in enumerate(groups):
            want = (n + 1) * len(setup) // len(groups)
            upto = max(k for k in cuts if k <= max(want, done))
            e(*setup[done:upto])
            done = max(done, upto)
            e(*g)
        e(*setup[done:])

    def start_tile(self, u):
        if u < 4:
            self.e("s_mov_b32 exec_hi, 0x00ffffff")
            for n in range(4 * u, 4 * u + 4):
                self.e(*self.x_dma(n))
            self.e("s_mov_b32 exec_hi, -1")
        else:
            if u in (5, 7):
                self.e(f"s_add_u32 s{sSOFF}, s{sWQP + (u - 4) // 2}, s{sSL}", f"s_add_u32 s{sSOFF}, s{sSOFF}, 0xc0000")
            self.eg(self.dma_groups(u))

    def slice_setup(self, j):
        if self.c["rot"]:
            ops = [f"s_add_u32 s6, s{sB}, {j}", "s_and_b32 s6, s6, 3"]
        else:
            ops = [f"s_mov_b32 s6, {j}"]
        return ops + [f"s_lshl_b32 s{sSL + j}, s6, 7", f"s_mul_i32 s{sWOJ + j}, s6, {64 * 896}"]

    def deferred(self, t, moved=False):
        c = self.c
        e = self.e
        if t == int(c["rdy"].split(",")[0]) and not moved:
            e(f"v_mov_b32 v{vRdy}, 0", f"buffer_store_dword v{vRdy}, v{vLead}, {srd(S_FL)}, 0 offen sc1")
        if t == 8 and c["stamps"]:
            e(f"s_mov_b32 s{sSTAMP}, s90", f"s_mov_b32 s{sSTAMP + 1}, s91",
              f"s_mov_b32 s{sSTAMP + 2}, s72", f"s_mov_b32 s{sSTAMP + 3}, s73")
            self.nstamp = 2
        if not moved and str(t) in c["early"].split(","):
            return
        if t == 4:
            e("; key fragment and exchange addresses")
            e("v_and_b32 v100, 15, v0", "v_lshrrev_b32 v101, 4, v0",
              f"v_lshl_add_u32 v102, v100, 7, s{sM4096}",
              "v_bfe_u32 v103, v0, 1, 3",
              "v_xor_b32 v103, v103, v101",
              f"v_lshl_add_u32 v{vKR}, v103, 4, v102",
              f"v_xor_b32 v{vKR + 1}, 64, v{vKR}",
              f"s_mov_b32 s6, {EX}",
              f"v_lshl_add_u32 v{vExQ}, v0, 4, s6",
              f"s_lshr_b32 s5, s{sW}, 1", "s_lshl_b32 s5, s5, 12", "s_add_u32 s6, s6, s5",
              f"s_and_b32 s5, s{sW}, 1",
              "s_lshl3_add_u32 s7, s5, s6",
              f"v_lshl_add_u32 v{vOW}, v0, 4, s7",
              "s_lshl_b32 s5, s5, 9", "s_add_u32 s6, s6, s5",
              "v_lshrrev_b32 v102, 5, v0",
              "v_lshl_add_u32 v102, v102, 4, v100",
              "v_and_b32 v103, 1, v101",
              "v_lshl_add_u32 v102, v102, 1, v103",
              f"v_lshl_add_u32 v{vQW}, v102, 3, s6")
            e(*self.slice_setup(1))
        if t == 7:
            e("; remaining descriptors")
            self.make_srd(S_V, 40, 50, sKVOFF, 262144)
            e(f"s_mul_i32 s{sT0}, s{sH}, 229376")
            self.make_srd(S_WO, 44, 54, sT0, 229376)
            e(f"s_lshl3_add_u32 s{sT1}, s{sBR}, s{sB}", f"s_lshl4_add_u32 s6, s{sT1}, s{sH}",
              f"s_mul_i32 s{sT0}, s6, 57344",
              f"s_add_u32 s{S_WS}, s{sWSP}, s{sT0}", f"s_addc_u32 s{S_WS + 1}, s{sWSP + 1}, 0",
              f"s_mov_b32 s{S_WS + 2}, 57344", f"s_mov_b32 s{S_WS + 3}, 0x00020000")
            e(f"s_lshl_b32 s6, s{sT1}, 12", f"s_add_u32 s6, s6, 0x{FLAGS:x}")
            if c["wflag"]:
                e(f"s_add_u32 s6, s6, s{sM1024}", f"s_lshl2_add_u32 s{sT1}, s{sT1}, s{sW}")
            e(f"s_add_u32 s{S_FL}, s{sWSP}, s6", f"s_addc_u32 s{S_FL + 1}, s{sWSP + 1}, 0",
              f"s_mov_b32 s{S_FL + 2}, 64", f"s_mov_b32 s{S_FL + 3}, 0x00020000",
              f"s_lshl_b32 s6, s{sT1}, 2",
              f"s_add_u32 s{S_DBG}, s{sDBGP}, s6", f"s_addc_u32 s{S_DBG + 1}, s{sDBGP + 1}, 0",
              f"s_mov_b32 s{S_DBG + 2}, 4",
              f"s_mov_b32 s6, s{sH}" if c["wflag"] else f"s_or_b32 s6, s{sH}, s{sW}", "s_cmp_eq_u32 s6, 0",
              f"s_cselect_b32 s6, 0, 0x{OOB:x}",
              f"v_lshl_add_u32 v{vLead}, v0, 2, s6")
        if t == 9:
            e("; value / output-weight fragment addresses")
            e(*self.slice_setup(2))
            e(*self.slice_setup(3))
            e("v_lshrrev_b32 v100, 2, v0",
              "v_bfe_u32 v101, v0, 3, 2",
              "v_and_b32 v102, 3, v0",
              f"v_xor_b32 v103, s{sW}, v101",
              "v_lshl_add_u32 v103, v103, 2, v102",
              "v_lshl_add_u32 v103, v100, 4, v103",
              f"s_add_u32 s6, s{sM4096}, 0x10000",
              f"v_lshl_add_u32 v{vVR}, v103, 3, s6")
            for p in range(1, 4):
                e(f"v_xor_b32 v{vVR + p}, {p * 4096}, v{vVR}")
            e("v_mul_u32_u24 v100, 896, v100",
              "v_lshl_add_u32 v100, v102, 3, v100",
              f"s_mul_i32 s6, s{sW}, 7")
            for m in range(4):
                e("v_xor_b32 v103, s6, v101", f"v_lshl_add_u32 v{vWoR + m}, v103, 5, v100")
                if m < 3:
                    e("s_add_u32 s6, s6, 1")
            e(f"v_add_u32 v{vExOwn}, s{sM4096}, v{vExQ}")
            for p in range(1, 4):
                e(f"v_xor_b32 v{vExOwn + p}, {p * 4096}, v{vExOwn}")
            e(f"s_mul_i32 s6, s{sW}, 14336",
              f"v_lshl_add_u32 v{vSt}, v0, 4, s6")
        if t == 17:
            e("; output-weight load offsets")
            cbits = struct.unpack("<I", struct.pack("<f", math.log2(math.e) / 16.0))[0]
            e(f"s_mov_b32 s{sC}, 0x{cbits:08x}", f"s_mov_b32 s{sC + 1}, 0x{cbits:08x}",
              f"s_mul_i32 s{sWOP}, s{sWSW}, {32 * 896}",
              f"s_sub_u32 s{sWOP + 1}, {32 * 896}, s{sWOP}",
              f"v_lshl_add_u32 v101, v0, 4, s{sM1024}")
            for u in range(7):
                e(f"v_add_u32 v102, {4096 * u}, v101",
                  "v_lshrrev_b32 v103, 8, v102",
                  "v_mul_u32_u24 v103, 147, v103",
                  "v_bfe_u32 v103, v103, 10, 2",
                  "v_lshlrev_b32 v103, 5, v103",
                  f"v_xor_b32 v{vWoD + u}, v103, v102")
        if t == 33:
            e("; cross-wave reduction addresses; attention-output operand addresses")
            assert self.issued > 35
            e(f"s_lshl_b32 s6, s{sW}, 2",
              f"v_lshl_add_u32 v{vRed}, v0, 4, s6",
              f"v_and_b32 v{vSq}, 15, v0",
              f"v_lshlrev_b32 v{vSq}, 4, v{vSq}",
              f"v_add_u32 v{vSq + 1}, {EX + 16384}, v{vSq}",
              f"s_lshl_b32 s6, s{sWSW}, 12",
              f"v_add_u32 v{vExQ}, s6, v{vExQ}",
              f"v_xor_b32 v{vExOb}, 0x1000, v{vExQ}")

    def dma_groups(self, t):
        c = self.c
        kind, j, i = TILES[t]
        p, q = i >> 1, i & 1
        g = []
        if kind in ("k", "v"):
            slot = (t % 8) * 16384
            head = [f"s_add_u32 m0, s{sM4096}, {slot}",
                    f"s_add_u32 s{sSOFF}, s{sSL + j}, {i * 65536}"]
            if c["numa"]:
                head[1] = f"s_add_u32 s{sSOFF}, s{sSOFF}, 0x10000" if q else f"s_add_u32 s{sSOFF}, s{sSL + j}, s{sKP + p}"
            for u in range(4):
                vo = vKD + (u & 1) if kind == "k" else vVD
                s = S_K if kind == "k" else S_V
                ld = f"buffer_load_dwordx4 v{vo}, {srd(s)}, s{sSOFF} offen offset:{1024 * u} {c['aux_kv']} lds"
                g.append([I(x) for x in (head if u == 0 else []) + [ld]])
        else:
            base = ((t - q) % 8) * 16384
            for u in (range(4, 7) if q else range(4)):
                head = [f"s_add_u32 m0, s{sM1024}, {base + 4096 * u}"]
                if kind == "wq":
                    head.append(f"s_add_u32 s{sSOFF}, s{sSOFF}, 0x40000" if u else f"s_add_u32 s{sSOFF}, s{sWQP + p}, s{sSL + j}")
                    ld = f"buffer_load_dwordx4 v{vWqD}, {srd(S_WQ)}, s{sSOFF} offen {c['aux_w']} lds"
                else:
                    if u == 0:
                        head.append(f"s_add_u32 s{sSOFF}, s{sWOP + p}, s{sWOJ + j}")
                    ld = f"buffer_load_dwordx4 v{vWoD + u}, {srd(S_WO)}, s{sSOFF} offen {c['aux_w']} lds"
                g.append([I(x) for x in head + [ld]])
        for grp in g:
            grp[-1].tag = t
        return g

    @staticmethod
    def frag(t, n):
        return aF + 16 * (t & 1) + 4 * n

    @staticmethod
    def wo_read(dst, n, p, h):
        off = p * 32768 + h * 14336 + (n >> 2) * 128
        return I(f"ds_read_b64_tr_b16 {rng('a', dst, 2)}, v{vWoR + (n & 3)} offset:{off}")

    def read_groups(self, t):
        kind, j, i = TILES[t]
        p, q = i >> 1, i & 1
        g = []
        if kind == "wq":
            for n, k in enumerate(range(4, 7) if q else range(4)):
                for h in range(2):
                    g.append([I(f"ds_read_b64_tr_b16 {rng('a', self.frag(t, n) + 2 * h, 2)}, v{vWqR} offset:{p * 32768 + k * 4096 + h * 512}")])
        elif kind == "k":
            for k in range(2):
                for kt in range(2):
                    g.append([I(f"ds_read_b128 {rng('a', self.frag(t, 2 * k + kt), 4)}, v{vKR + k} offset:{i * 16384 + kt * 2048}")])
        elif kind == "v":
            for pp in range(4):
                for h in range(2):
                    g.append([I(f"ds_read_b64_tr_b16 {rng('a', self.frag(t, pp) + 2 * h, 2)}, v{vVR + pp} offset:{i * 16384 + h * 2048}")])
        elif kind == "wo" and self.c["ochain"]:
            for m, n in enumerate(range(2 * i, min(7, 2 * i + 2))):
                for pp in range(2):
                    for h in range(2):
                        g.append([self.wo_read(self.frag(t, 2 * m + pp) + 2 * h, n, pp, h)])
        elif kind == "wo":
            for m, n in enumerate(range(4, 7) if q else range(4)):
                for h in range(2):
                    g.append([self.wo_read(self.frag(t, m) + 2 * h, n, p, h)])
        return g

    @staticmethod
    def mfma(d, a, b, zero=False):
        dd = rng('v', d, 4)
        return I(f"v_mfma_f32_16x16x32_bf16 {dd}, {rng('a', a, 4)}, {b}, {'0' if zero else dd}")

    def order(self, nouter, ninner):
        return [(o, k if o % 2 == 0 else ninner - 1 - k) for o in range(nouter) for k in range(ninner)]

    def mfmas(self, t):
        kind, j, i = TILES[t]
        p, q = i >> 1, i & 1
        chain = self.c["chain"]
        m = []
        seen = set()

        def add(d, a, b, fresh):
            m.append(self.mfma(d, a, b, fresh and d not in seen))
            seen.add(d)
        if kind == "wq":
            ks = list(range(4, 7) if q else range(4))
            seq = self.order(4, len(ks)) if chain else [(qt, n) for n in range(len(ks)) for qt in range(4)]
            for qt, n in seq:
                add(vG1 + 4 * qt, self.frag(t, n), rng('a', aX + 16 * (7 * p + ks[n]) + 4 * qt, 4), i == 0)
        elif kind == "k":
            if chain:
                seq = [(o // 2, (o % 2) ^ ((o // 2) % 2), k) for o, k in self.order(8, 2)]
            else:
                seq = [(qt, kt, k) for k in range(2) for kt in range(2) for qt in range(4)]
            for qt, kt, k in seq:
                add(vS + 32 * i + 8 * qt + 4 * kt, self.frag(t, 2 * k + kt), rng('v', vQ + 16 * k + 4 * qt, 4), j == 0)
        elif kind == "v":
            seq = self.order(4, 4) if chain else [(qt, pp) for pp in range(4) for qt in range(4)]
            for qt, pp in seq:
                b = rng('v', vP + 16 * i + 4 * qt, 4) if pp == 0 else rng('a', aPP + 48 * i + 16 * (pp - 1) + 4 * qt, 4)
                add(vG1 + 4 * qt, self.frag(t, pp), b, i == 0)
        elif kind == "wo" and self.c["ochain"]:
            ns = list(range(2 * i, min(7, 2 * i + 2)))
            for o, pp in self.order(4 * len(ns), 2):
                mm, qt = o // 4, (o % 4 if (o // 4) % 2 == 0 else 3 - o % 4)
                add(vS + 16 * ns[mm] + 4 * qt, self.frag(t, 2 * mm + pp), rng('a', aB2 + 16 * pp + 4 * qt, 4), j == 0)
        elif kind == "wo":
            ns = list(range(4, 7) if q else range(4))
            seq = self.order(len(ns), 4) if chain else [(mm, qt) for mm in range(len(ns)) for qt in range(4)]
            for mm, qt in seq:
                add(vS + 16 * ns[mm] + 4 * qt, self.frag(t, mm), rng('a', aB2 + 16 * p + 4 * qt, 4), j == 0 and p == 0)
        return m

    @staticmethod
    def counted_waits(seq):
        out = []
        pending = []
        for ins in seq:
            need = [k for k, r in enumerate(pending) if r.writes & ins.reads]
            if need and ins.kind != "ds":
                left = len(pending) - 1 - max(need)
                out.append(I(f"s_waitcnt lgkmcnt({min(left, 14)})"))
                pending = pending[max(need) + 1:]
            out.append(ins)
            if ins.kind == "ds":
                pending.append(ins)
        return out

    def max_ops(self, i, dst):
        ops = []
        for step in range(4):
            for qt in range(4):
                r = vS + 32 * i + 8 * qt
                d = dst + qt
                if step == 0:
                    ops.append(I(f"v_max3_f32 v{d}, v{r}, v{r + 1}, v{r + 2}"))
                elif step < 3:
                    ops.append(I(f"v_max3_f32 v{d}, v{r + 2 * step + 1}, v{r + 2 * step + 2}, v{d}"))
                else:
                    ops.append(I(f"v_max_f32 v{d}, v{r + 7}, v{d}"))
        ops += [I(f"v_mul_f32 v{dst + qt}, s{sC}, v{dst + qt}") for qt in range(4)]
        return ops

    def exp_ops(self, i, m, qts=range(4)):
        g = []
        for qt in qts:
            src, mod = bcast(m + qt, 3)
            for half in range(2):
                r = vS + 32 * i + 8 * qt + 4 * half
                g.append([I(f"v_pk_fma_f32 {pair(r + x)}, {pair(r + x)}, s[{sC}:{sC + 1}], {src} {mod} neg_lo:[0,0,1] neg_hi:[0,0,1]")
                          for x in (0, 2)] + [I(f"v_exp_f32 v{r + x}, v{r + x}") for x in range(2)])
                g.append([I(f"v_exp_f32 v{r + x}, v{r + x}") for x in range(2, 4)])
        return g

    def sum_ops(self, i, dst):
        ops = []
        for step in range(4):
            for qt in range(4):
                r = vS + 32 * i + 8 * qt
                tmp = vT + 2 * qt
                if step == 0:
                    ops.append(I(f"v_pk_add_f32 {pair(tmp)}, {pair(r)}, {pair(r + 2)}"))
                elif step < 3:
                    ops.append(I(f"v_pk_add_f32 {pair(tmp)}, {pair(tmp)}, {pair(r + 2 + 2 * step)}"))
                else:
                    ops.append(I(f"v_add_f32 v{dst + qt}, v{tmp}, v{tmp + 1}"))
        return ops

    def early_exp(self, i):
        m = vMC + 4 * i
        g = [[x] for x in self.max_ops(i, m)] + self.exp_ops(i, m)
        if i < 2:
            g += [[x] for x in self.sum_ops(i, vSUM + 4 * i)]
        return g

    def pack_ops(self, i):
        ops = []
        for qt in range(4):
            r = vS + 32 * i + 8 * qt
            p = vP + 16 * i + 4 * qt
            if i < 3:
                src, mod = bcast(vMC + 4 * i + qt, 2)
                ops += [I(f"v_pk_mul_f32 {pair(r + x)}, {pair(r + x)}, {src} {mod}") for x in range(0, 8, 2)]
            for x in range(0, 8, 2):
                if i >= 2:
                    ops.append(I(f"v_pk_add_f32 {pair(vL + 2 * qt)}, {pair(vL + 2 * qt)}, {pair(r + x)}"))
                ops.append(I(f"v_cvt_pk_bf16_f32 v{p + x // 2}, v{r + x}, v{r + x + 1}"))
        return ops

    def p_writes(self, i):
        return [[I(f"ds_write_b128 v{vExOwn}, {rng('v', vP + 16 * i + 4 * qt, 4)} offset:{(i & 1) * 16384 + qt * 1024}")]
                for qt in range(4)]

    def p_reads(self, i):
        return [[I(f"ds_read_b128 {rng('a', aPP + 48 * i + 16 * (pp - 1) + 4 * qt, 4)}, v{vExOwn + pp} offset:{(i & 1) * 16384 + qt * 1024}")]
                for qt, pp in ([(qt, pp) for qt in range(4) for pp in range(1, 4)] if self.c["chain"]
                               else [(qt, pp) for pp in range(1, 4) for qt in range(4)])]

    def lane_reduce(self, op, r):
        self.e(f"v_permlane32_swap_b32 v{r}, v{r + 2}",
               f"v_permlane32_swap_b32 v{r + 1}, v{r + 3}",
               f"{op} v{r}, v{r}, v{r + 2}",
               f"{op} v{r + 1}, v{r + 1}, v{r + 3}",
               f"v_permlane16_swap_b32 v{r}, v{r + 1}",
               f"{op} v{r}, v{r}, v{r + 1}")

    def publish_groups(self, scale):
        g = []
        for qt in range(4):
            r = vG1 + 4 * qt
            ops = []
            if scale:
                src, mod = bcast(vRL + qt, 2)
                ops += [I(f"v_pk_mul_f32 {pair(r + x)}, {pair(r + x)}, {src} {mod}") for x in (0, 2)]
            ops += [I(f"v_cvt_pk_bf16_f32 v{vCV + 2 * qt}, v{r}, v{r + 1}"),
                    I(f"v_cvt_pk_bf16_f32 v{vCV + 2 * qt + 1}, v{r + 2}, v{r + 3}")]
            g.append((ops, [I(f"ds_write_b64 v{vOW if scale else vQW}, {pair(vCV + 2 * qt)} offset:{qt * 1024}")]))
        return g

    def g1_publish(self, scale, skip=0):
        g = self.publish_groups(scale)[skip:]
        self.eg([ops for ops, _ in g] + [wr for _, wr in g])

    def with_publish(self, seq, mf, scale):
        per = len(mf) // 4
        out = list(seq)
        for qt, (ops, wr) in list(enumerate(self.publish_groups(scale)))[:3]:
            at = out.index(mf[per * (qt + 2) - 1]) + 1
            out[at:at] = ops + wr
        return out

    def b2_reads(self, kind):
        g = []
        qt_major = self.c["chain"] and (kind != "wo" or self.c["ochain"])
        for x in range(8):
            k, qt = (x % 2, x // 2) if qt_major else (x // 4, x % 4)
            if True:
                if kind == "k":
                    g.append([I(f"ds_read_b128 {rng('v', vQ + 16 * k + 4 * qt, 4)}, v{vExQ} offset:{k * 4096 + qt * 1024}")])
                else:
                    g.append([I(f"ds_read_b128 {rng('a', aB2 + 16 * k + 4 * qt, 4)}, v{vExOb if k else vExQ} offset:{qt * 1024}")])
        return g

    def weave(self, mf, front, reads, spread, late):
        if not mf:
            return sum(front + reads + spread + late, [])
        n = len(mf)
        d = self.c["dgap"]
        while d > 1 and d * (len(front) + len(late) + len(spread)) > n:
            d -= 1
        gaps = [[] for _ in range(n)]
        taken = set()

        def put(at, g):
            at = min(n - 1, max(0, at))
            gaps[at].append(g)
            taken.add(at)
        for k, g in enumerate(front):
            put(d * k, g)
        lo = d * len(front)
        hi = n - d * len(late)
        for k, g in enumerate(spread):
            put(lo + (2 * k + 1) * max(hi - lo, 0) // (2 * len(spread)), g)
        for k, g in enumerate(late):
            put(n - 1 - d * (len(late) - 1 - k), g)
        free = [k for k in range(n - 3) if k not in taken] or list(range(n))
        per = max(self.c["rpg"], -(-len(reads) // len(free)), 1)
        for k, g in enumerate(reads):
            gaps[free[k // per]].insert(k % per, g)
        out = []
        for m, gs in zip(mf, gaps):
            out.append(m)
            for g in gs:
                out += g
        return out

    def body(self):
        e = self.e
        c = self.c
        e("; x fragments")
        self.sync(3)
        if c["stamps"]:
            e("s_mov_b32 s90, s98", "s_mov_b32 s91, s99", "s_memrealtime s[72:73]")
        xr = []
        for k in range(14):
            for qt in range(4):
                va = (108 if qt < 2 else 110) + (k >= 7)
                xr.append([I(f"ds_read_b128 {rng('a', aX + 16 * k + 4 * qt, 4)}, v{va} offset:{qt * 16384 + (k % 7) * 64}")])
        later = {}
        if c["xsplit"]:
            keep = []
            for n, g in enumerate(xr):
                k, qt = divmod(n, 4)
                if qt < 2 and k >= 4:
                    later.setdefault(4 if k < 7 else 5 if k < 11 else 6, []).append(g)
                else:
                    keep.append(g)
            xr = keep
        self.eg(self.dma_at(3, "f") + xr[:28] + self.dma_at(3, "s") + self.dma_at(3, "l") + self.dma_at(3, "m") + xr[28:] + self.dma_at(3, "b"))
        for t in range(4, 64):
            kind, j, i = TILES[t]
            e(f"; step {t}: tile {kind}{j}_{i}")
            if t in (12, 36, 44, 60):
                self.stamp()
            self.sync(t)
            front = self.dma_at(t, "f")
            spread = self.dma_at(t, "s")
            late = self.dma_at(t, "l")
            if t == int(c["rdy"].split(",")[1]):
                spread.append([I(f"v_mov_b32 v{vRdy}, 1"),
                               I(f"buffer_store_dword v{vRdy}, v{vLead}, {srd(S_DBG)}, 0 offen sc1")])
            if t == int(c["rdy"].split(",")[2]):
                spread.append([I(f"buffer_load_dword v{vRdy}, off, {srd(S_DBG)}, 0 sc1")])
            reads = self.read_groups(t) + later.get(t, [])
            mf = self.mfmas(t - 1) if t > 4 and t != 36 else []
            if c["ochain"] and (kind, i) == ("wo", 0):
                reads = []
            piped = c["ppub"] and c["chain"] and (kind, i) in (("k", 0), ("wo", 0)) and t != 40
            if (kind, i) in (("k", 1), ("wo", 1)):
                b2 = self.b2_reads(kind)
                if c["ochain"] and kind == "wo":
                    r0 = self.read_groups(t - 1)
                    b2 = r0[:4] + b2 + r0[4:]
                e(*self.counted_waits(sum(b2 + front, []) + self.weave(mf, [], reads, spread, late)))
            elif t in (34, 35):
                ex = self.early_exp(t - 34)
                e(*interleave(mf[:4], front + reads))
                e(*interleave(mf[4:], ex[:36]))
                self.eg(spread + ex[36:] + late)
            elif t == 36:
                self.softmax_head(front, reads, spread, late)
            elif t in (37, 38, 39):
                self.eg(self.p_reads(i - 1) + front)
                if i == 1:
                    self.eg(self.exp_ops(3, vM, (2, 3)))
                e(*self.pack_ops(i))
                wr = self.p_writes(i)
                if i == 3:
                    for qt in range(4):
                        e(f"v_add_f32 v{vRL + qt}, v{vL + 2 * qt}, v{vL + 2 * qt + 1}")
                    self.lane_reduce("v_add_f32", vRL)
                    wr.insert(0, [I(f"ds_write_b32 v{vRed}, v{vRL} offset:{LSUM}")])
                e("s_waitcnt lgkmcnt(0)")
                e(*self.weave(mf, wr, reads, spread, late))
            elif t == 40:
                tmp = vS + 112
                lr = [[I(f"ds_read_b128 {rng('v', tmp + 4 * qt, 4)}, v{vSq} offset:{LSUM + qt * 256}")] for qt in range(4)]
                extra = []
                for qt in range(4):
                    r = tmp + 4 * qt
                    extra.append([I(f"v_add_f32 v{r}, v{r}, v{r + 1}"), I(f"v_add_f32 v{r + 2}, v{r + 2}, v{r + 3}")])
                for qt in range(4):
                    r = tmp + 4 * qt
                    extra.append([I(f"v_add_f32 v{r}, v{r}, v{r + 2}"), I(f"v_rcp_f32 v{vRL + qt}, v{r}")])
                seq = sum(self.p_reads(3) + front, []) + interleave(mf[:4], lr) + interleave(mf[4:10], reads) + interleave(mf[10:], extra)
                e(*self.counted_waits(seq))
                self.eg(spread + late)
            elif piped:
                e(*self.with_publish(self.weave(mf, front, reads, spread, late), mf, kind == "wo"))
            elif t == 63 and c["nolag"]:
                self.eg(reads + front + spread + late)
            else:
                e(*self.weave(mf, front, reads, spread, late))
            if t != 36:
                self.eg(self.dma_at(t, "m"))
            if (kind, i) in (("k", 0), ("wo", 0)):
                self.g1_publish(kind == "wo", 3 if piped else 0)
            if t == 62 and c["nolag"]:
                e("s_waitcnt lgkmcnt(0)", *self.mfmas(62))
            self.deferred(t)
            if t == 35:
                e("; last score tile and row maximum")
                e("s_waitcnt lgkmcnt(0)")
                mf = self.mfmas(t)
                e(*interleave(mf, self.early_exp(2)))
                e(*self.max_ops(3, vM))
                for qt in range(4):
                    e(f"v_max3_f32 v{vM + qt}, v{vM + qt}, v{vMC + qt}, v{vMC + 4 + qt}")
                for qt in range(4):
                    e(f"v_max_f32 v{vM + qt}, v{vM + qt}, v{vMC + 8 + qt}")
                self.lane_reduce("v_max_f32", vM)
                e(f"v_add_u32 v{vT}, {EX + 16384}, v{vRed}",
                  f"ds_write_b32 v{vT}, v{vM}")
            self.eg(self.dma_at(t, "b"))
        assert self.issued == len(TILES)
        self.last_slice()
        self.fused_reduce()
        self.finish()

    def softmax_head(self, front, reads, spread, late):
        e = self.e
        tmp = 96
        for qt in range(4):
            e(f"ds_read_b128 {rng('v', tmp + 4 * qt, 4)}, v{vSq + 1} offset:{qt * 256}")
        self.eg(front + reads)
        e(f"s_waitcnt lgkmcnt({len(reads)})")
        for qt in range(4):
            r = tmp + 4 * qt
            e(f"v_max3_f32 v{r}, v{r}, v{r + 1}, v{r + 2}")
        for qt in range(4):
            r = tmp + 4 * qt
            e(f"v_max_f32 v{vM + qt}, v{r}, v{r + 3}")
        for x in range(12):
            e(f"v_sub_f32 v{vMC + x}, v{vMC + x}, v{vM + x % 4}")
        for x in range(12):
            e(f"v_exp_f32 v{vMC + x}, v{vMC + x}")
        for qt in range(4):
            e(f"v_mul_f32 v{vL + 2 * qt}, v{vSUM + qt}, v{vMC + qt}",
              f"v_mul_f32 v{vL + 2 * qt + 1}, v{vSUM + 4 + qt}, v{vMC + 4 + qt}")
        e(*self.pack_ops(0))
        self.eg(spread + self.p_writes(0) + late + self.dma_at(36, "m") + self.exp_ops(3, vM, (0, 1)))

    def last_slice(self):
        e = self.e
        e("; last value tile, then the last output-projection slice column block by column block")
        e("s_waitcnt lgkmcnt(0)")
        mf = self.mfmas(63)
        if self.c["ppub"] and self.c["chain"]:
            e(*self.with_publish(mf, mf, True))
            self.g1_publish(True, 3)
        else:
            e(*mf)
            self.g1_publish(True)
        self.sync(67, 60, 67, True)
        self.stamp()
        self.eg(self.b2_reads("last"))

        def reads(n):
            return [[self.wo_read(aF + 8 * (n % 3) + 4 * p + 2 * h, n, p, h)] for p in range(2) for h in range(2)]

        def stores(n):
            g = []
            for qp in range(2):
                u = 2 * n + qp
                d = vP + 4 * u
                r = vS + 16 * n + 8 * qp
                cv = [I(f"v_cvt_pk_bf16_f32 v{d + x}, v{r + 2 * x}, v{r + 2 * x + 1}") for x in range(4)]
                g += [cv[:2], cv[2:]]
                grp = []
                if self.c["keep"]:
                    grp += [I(f"s_cmp_eq_u32 s{sH}, {u}"), I(f"s_cselect_b32 s{sSOFF}, s{sT2}, {(u // 4) * 4096}")]
                elif u % 4 == 0:
                    grp.append(I(f"s_mov_b32 s{sSOFF}, {u * 1024}"))
                grp.append(I(f"buffer_store_dwordx4 {rng('v', d, 4)}, v{vSt}, {srd(S_WS)}, s{sSOFF} offen offset:{(u % 4) * 1024} {self.c['aux_st']}"))
                g.append(grp)
            return g

        e(f"s_mov_b32 s{sT2}, 0x{OOB:x}")
        self.eg(reads(0))
        for n in range(7):
            e("s_waitcnt lgkmcnt(0)")
            mf = [self.mfma(vS + 16 * n + 4 * qt, aF + 8 * (n % 3) + 4 * p, rng('a', aB2 + 16 * p + 4 * qt, 4))
                  for qt, p in (self.order(4, 2) if self.c["chain"] else [(qt, p) for p in range(2) for qt in range(4)])]
            e(*interleave(mf[:2], reads(n + 1) if n < 6 else []))
            e(*interleave(mf[2:], stores(n - 1) if n > 0 else []))
        self.eg(stores(6))
        self.stamp()

    def fused_reduce(self):
        e = self.e
        c = self.c
        e("; publish, wait for the other heads of this batch, reduce one slab of the output")
        e(f"s_lshl3_add_u32 s3, s{sBR}, s{sB}",
          f"s_mul_i32 s4, s{sW}, 14" if c["wflag"] or c["keep"] else f"s_lshl_b32 s4, s{sH}, 2",
          f"s_add_u32 s4, s4, s{sH if c['wflag'] or c['keep'] else sW}")
        if c["omap"]:
            e(f"s_lshr_b32 s4, s{sH}, 1", f"s_lshl2_add_u32 s4, s4, s{sW}", f"s_lshl1_add_u32 s4, s4, s{sHP}")
        e(
          f"s_mul_i32 s5, s3, {16 * 57344}",
          f"s_add_u32 s{S_K}, s{sWSP}, s5", f"s_addc_u32 s{S_K + 1}, s{sWSP + 1}, 0",
          f"s_mov_b32 s{S_K + 2}, {16 * 57344}",
          f"s_mov_b32 s{S_V}, s{sOUT}", f"s_mov_b32 s{S_V + 1}, s{sOUT + 1}", f"s_mov_b32 s{S_V + 2}, 917504",
          "s_lshl_b32 s5, s4, 10", "v_lshl_add_u32 v1, v0, 4, s5",
          "s_and_b32 s5, s4, 1",
          "s_lshr_b32 s6, s4, 1",
          f"s_lshl1_add_u32 s5, s{sB}, s5",
          f"s_mul_i32 s{sT0}, s5, {32 * 1792}",
          f"s_mul_i32 s7, s{sBR}, 896", f"s_add_u32 s{sT0}, s{sT0}, s7",
          "s_lshl_b32 s6, s6, 5", f"s_add_u32 s{sT0}, s{sT0}, s6",
          "v_and_b32 v3, 15, v0", "v_mul_u32_u24 v2, 1792, v3",
          "v_lshrrev_b32 v4, 4, v0", "v_lshl_add_u32 v2, v4, 3, v2",
          f"v_add_u32 v2, s{sT0}, v2",
          "v_lshlrev_b32 v3, 2, v3",
          f"s_lshl_b32 s5, s{sH}, 2", f"s_cmp_eq_u32 s{sW}, {'s%d' % sW if c['wflag'] else 0}", f"s_cselect_b32 s5, s5, 0x{OOB:x}",
          "v_lshl_add_u32 v4, v0, 6, s5",
          "v_mov_b32 v5, 1",
          f"v_readfirstlane_b32 s6, v{vRdy}",
          f"s_mov_b32 s7, {SPIN_MAX}",
          "s_cmp_eq_u32 s6, 1", "s_cbranch_scc1 L_ready",
          "L_rdy_spin:",
          f"buffer_load_dword v{vRdy}, off, {srd(S_DBG)}, 0 sc1",
          "s_waitcnt vmcnt(0)",
          f"v_readfirstlane_b32 s6, v{vRdy}",
          "s_sub_u32 s7, s7, 1", "s_cmp_eq_u32 s7, 0", "s_cbranch_scc1 L_ready",
          "s_cmp_eq_u32 s6, 1", "s_cbranch_scc0 L_rdy_spin",
          "L_ready:")
        if c["keep"]:
            e(f"s_min_u32 s6, s{sH}, 13", "s_lshl_b32 s6, s6, 2", "s_set_gpr_idx_on s6, gpr_idx(SRC0)", "s_nop 1")
            for x in range(4):
                e(f"v_mov_b32 v{8 + x}, v{vP + x}")
            e("s_set_gpr_idx_off", "s_nop 1")
        e("s_waitcnt vmcnt(0)")
        self.stamp()
        if not c["wflag"]:
            e("s_barrier")
        e(f"buffer_store_dword v5, v4, {srd(S_FL)}, 0 offen sc1",
          f"s_cmp_ge_u32 s{sH}, 14", "s_cbranch_scc1 L_fin",
          f"s_mov_b32 s7, {SPIN_MAX}",
          "s_mov_b32 s4, 0x00003f80", "s_mov_b32 s5, 0x3f800000", f"s_mov_b32 s6, {16 * 1792}")
        acc = 128
        if c["eg"]:
            self.early_gather(acc)
        else:
            n = c["ppoll"]
            if c["onepoll"]:
                e(f"s_cmp_lg_u32 s{sW}, 0", "s_cbranch_scc1 L_go")
            for k in range(n):
                e(f"buffer_load_dword v{16 + k}, v3, {srd(S_FL)}, 0 offen sc1", f"s_sleep {c['sleep']}")
            e("; bounded poll of the group's flags with a short back-off between reads", "L_poll:")
            for k in range(n + 1):
                e(f"buffer_load_dword v{16 + (k + n) % (n + 1)}, v3, {srd(S_FL)}, 0 offen sc1",
                  f"s_waitcnt vmcnt({n})",
                  f"v_cmp_ne_u32 vcc, 1, v{16 + k}",
                  "s_nop 1",
                  "s_cbranch_vccz L_go")
                if c["sleep"]:
                    e(f"s_sleep {c['sleep']}")
            e("s_sub_u32 s7, s7, 1", "s_cmp_eq_u32 s7, 0", "s_cbranch_scc0 L_poll",
              "L_go:")
            if c["onepoll"]:
                e("s_barrier")
            if c["keep"]:
                nl = 15
                for k in range(nl):
                    e(f"s_cmp_le_u32 s{sH}, {k}", f"s_cselect_b32 s{sSOFF}, {k + 1}, {k}", f"s_mul_i32 s{sSOFF}, s{sSOFF}, 57344",
                      f"buffer_load_dwordx4 {rng('v', 64 + 4 * k, 4)}, v1, {srd(S_K)}, s{sSOFF} offen {c['aux_rd']}")
                for x in range(4):
                    for hi in range(2):
                        e(f"v_dot2_f32_bf16 v{acc + 2 * x + hi}, v{8 + x}, s{4 + hi}, 0")
            else:
                nl = 16
                e(f"s_mov_b32 s{sSOFF}, 0")
                for h in range(16):
                    e(f"buffer_load_dwordx4 {rng('v', 64 + 4 * h, 4)}, v1, {srd(S_K)}, s{sSOFF} offen {c['aux_rd']}")
                    if h < 15:
                        e(f"s_add_u32 s{sSOFF}, s{sSOFF}, 57344")
            for h in range(nl):
                e(f"s_waitcnt vmcnt({nl - 1 - h})")
                for x in range(4):
                    for hi in range(2):
                        a = acc + 2 * x + hi
                        e(f"v_dot2_f32_bf16 v{a}, v{64 + 4 * h + x}, s{4 + hi}, {'0' if h == 0 and nl == 16 else 'v%d' % a}")
        for k in range(4):
            e(f"v_cvt_pk_bf16_f32 v{44 + k}, v{acc + 2 * k}, v{acc + 1 + 2 * k}")
        e(f"buffer_store_dwordx2 v[44:45], v2, {srd(S_V)}, 0 offen {c['aux_out']}",
          f"buffer_store_dwordx2 v[46:47], v2, {srd(S_V)}, s6 offen {c['aux_out']}")
        e("L_fin:")

    def early_gather(self, acc):
        e = self.e
        c = self.c
        n = c["eg"]
        ng = 16 // n
        full = (1 << ng) - 1
        sDone, sPend, sPrev, sNew = sSL, sSL + 1, sSL + 2, sSL + 3
        e(f"s_mov_b32 s{sDone}, 0", f"s_mov_b32 s{sPend}, 0",
          "L_poll:",
          f"s_mov_b32 s{sPrev}, s{sPend}", f"s_mov_b32 s{sPend}, 0",
          f"s_cmp_eq_u32 s{sDone}, {full}", "s_cbranch_scc1 L_last",
          f"buffer_load_dword v6, v3, {srd(S_FL)}, 0 offen sc1",
          "s_sub_u32 s7, s7, 1",
          "s_waitcnt vmcnt(0)",
          "v_cmp_eq_u32 vcc, 1, v6",
          "s_cmp_eq_u32 s7, 0",
          f"s_cselect_b32 s{sNew}, -1, vcc_lo")
        for k in range(ng):
            m = ((1 << n) - 1) << (n * k)
            e(f"s_bitcmp1_b32 s{sDone}, {k}", f"s_cbranch_scc1 L_noload{k}",
              f"s_and_b32 s3, s{sNew}, {m}", f"s_cmp_eq_u32 s3, {m}", f"s_cbranch_scc0 L_noload{k}",
              f"s_bitset1_b32 s{sPend}, {k}", f"s_bitset1_b32 s{sDone}, {k}")
            for h in range(n * k, n * k + n):
                e(f"s_mov_b32 s{sSOFF}, {h * 57344}",
                  f"buffer_load_dwordx4 {rng('v', 64 + 4 * h, 4)}, v1, {srd(S_K)}, s{sSOFF} offen {c['aux_rd']}")
            e(f"L_noload{k}:")
        e("s_branch L_accum", "L_last:", "s_waitcnt vmcnt(0)", "L_accum:")
        for k in range(ng):
            e(f"s_bitcmp1_b32 s{sPrev}, {k}", f"s_cbranch_scc0 L_noacc{k}")
            for h in range(n * k, n * k + n):
                for x in range(4):
                    for hi in range(2):
                        a = acc + 8 * k + 2 * x + hi
                        e(f"v_dot2_f32_bf16 v{a}, v{64 + 4 * h + x}, s{4 + hi}, {'0' if h == n * k else 'v%d' % a}")
            e(f"L_noacc{k}:")
        e(f"s_cmp_lg_u32 s{sPend}, 0", "s_cbranch_scc1 L_poll",
          f"s_cmp_eq_u32 s{sDone}, {full}", "s_cbranch_scc1 L_sum")
        if c["sleep"]:
            e(f"s_sleep {c['sleep']}")
        e("s_branch L_poll", "L_sum:", "s_nop 2")
        step = 1
        while step < ng:
            for k in range(0, ng, 2 * step):
                for x in range(0, 8, 2):
                    e(f"v_pk_add_f32 {pair(acc + 8 * k + x)}, {pair(acc + 8 * k + x)}, {pair(acc + 8 * (k + step) + x)}")
            step *= 2

    def finish(self):
        e = self.e
        if self.c["stamps"]:
            e("s_waitcnt vmcnt(0)")
            while self.nstamp < 10:
                self.stamp()
            e("s_waitcnt lgkmcnt(0)",
              f"s_lshl2_add_u32 s6, s2, s{sW}", "s_lshl_b32 s6, s6, 7",
              "s_add_u32 s6, s6, 0x1000000",
              f"s_add_u32 s{S_WS}, s{sWSP}, s6", f"s_addc_u32 s{S_WS + 1}, s{sWSP + 1}, 0",
              f"s_mov_b32 s{S_WS + 2}, 128",
              "v_lshlrev_b32 v4, 2, v0",
              "v_mov_b32 v0, 0")
            if self.c["stamps"] == 2:
                e(f"v_writelane_b32 v{vT3}, s98, 60", "s_memtime s[96:97]", "s_waitcnt lgkmcnt(0)",
                  "v_mov_b32 v2, s96", "v_mov_b32 v3, s100",
                  f"buffer_store_dwordx2 v[2:3], v0, {srd(S_WS)}, 0 offen offset:120",
                  f"s_lshl2_add_u32 s7, s2, s{sW}", "s_lshl_b32 s7, s7, 9",
                  "s_add_u32 s7, s7, 0x1100000",
                  f"s_add_u32 s{S_X}, s{sWSP}, s7", f"s_addc_u32 s{S_X + 1}, s{sWSP + 1}, 0", f"s_mov_b32 s{S_X + 2}, 512",
                  f"buffer_store_dword v{vT2}, v4, {srd(S_X)}, 0 offen",
                  f"buffer_store_dword v{vT3}, v4, {srd(S_X)}, 0 offen offset:256")
            for k in range(10):
                r = sSTAMP + 2 * k
                e(f"v_mov_b32 v2, s{r}", f"v_mov_b32 v3, s{r + 1}",
                  f"buffer_store_dwordx2 v[2:3], v0, {srd(S_WS)}, 0 offen offset:{8 * k}")

    def main(self):
        self.prologue()
        self.body()
        self.e("L_main_end:", "s_endpgm")


HEADER = """; Fused Q-projection / attention / output-projection for both branches, one launch.
; Kernarg (8-byte pointers): A_x A_k A_v A_wq A_wo B_x B_k B_v B_wq B_wo out debug ws.
; One workgroup (4 waves) per (branch, batch, head); ids 8 apart share weights / grouped K,V through L2.
; Each workgroup writes its bf16 partial of out to ws with write-through stores and sets a flag;
; 14 of the 16 workgroups of a (branch, batch) then sum the 16 partials of their slab in a fixed order.
; The flag line is cleared by the head-0 workgroup, which announces that through debug[group].
; @launch grid=(256,1,1) block=(256,1,1) lds=163840
.amdgcn_target "amdgcn-amd-amdhsa--gfx950"
.text
"""

KD = """.amdhsa_kernel {label}
  .amdhsa_next_free_vgpr 512
  .amdhsa_next_free_sgpr 102
  .amdhsa_accum_offset 256
  .amdhsa_group_segment_fixed_size 0
  .amdhsa_kernarg_size 104
  .amdhsa_user_sgpr_count 2
  .amdhsa_user_sgpr_kernarg_segment_ptr 1
  .amdhsa_system_sgpr_workgroup_id_x 1
  .amdhsa_float_denorm_mode_32 3
.end_amdhsa_kernel
"""


def ablate(ins, what):
    out = []
    step = 0
    for x in ins:
        if x.text.startswith("; step "):
            step = int(x.text.split()[2][:-1])
        if x.text.startswith("; publish"):
            step = 99
        sm = 34 <= step <= 39
        if "v" in what and sm and x.kind == "valu" and not x.text.startswith("v_add_u32"):
            continue
        if "w" in what and sm and x.text.startswith("ds_write_b128"):
            continue
        if "r" in what and 37 <= step <= 40 and x.text.startswith("ds_read_b128 a"):
            continue
        if "m" in what and x.kind == "mfma":
            continue
        if "p" in what and step < 99 and (x.text.startswith("ds_write_b64") or x.text.startswith("v_cvt_pk_bf16_f32 v4")):
            continue
        out.append(x)
    return out


def build(cfg):
    g = Gen(cfg)
    g.main()
    if cfg["abl"]:
        g.o = ablate(g.o, cfg["abl"])
    label = NAME + "_kernel"
    s = HEADER + f".globl {label}\n.p2align 8\n.type {label},@function\n{label}:\n"
    s += render(pad_hazards(g.o))
    s += '.section .rodata,"a"\n.p2align 6\n' + KD.format(label=label)
    return s


if __name__ == "__main__":
    ap = argparse.ArgumentParser()
    ap.add_argument("-o", default="cdna_kernels/" + NAME + ".s")
    ap.add_argument("opts", nargs="*")
    a = ap.parse_args()
    cfg = dict(DEFAULTS)
    for o in a.opts:
        k, v = o.split("=", 1)
        assert k in cfg, k
        cfg[k] = type(cfg[k])(v.replace("+", " "))
    open(a.o, "w").write(build(cfg))
    print("wrote", a.o, " ".join(a.opts), file=sys.stderr)
```

```python
import argparse
import json
import math
import struct
import sys

from asmdsl import I, interleave, pad_hazards, render, rng

NAME = "concat_heads__gqa_block_cached__mha_block_cached__near_ridge"

DEFAULTS = dict(
    ks="5l,5l,5l,4m",
    vs="5l,5l,5l,4l",
    qs="4m,4l,4s,4f",
    os="4m,4l,4s,4f",
    over="8:5m/9:6b/10:6b/11:6b/12:3l/35:5b/36:3l/37:3m/38:3l/39:4b/40:4m/41:4l/42:4s/43:5l/44:6b/45:6s/46:6l/47:6l/48:3l/49:3f",
    pre=7,
    rpg=2,
    dgap=3,
    kbar=0,
    aux_x="", aux_w="", aux_kv="nt", aux_st="sc1", aux_rd="sc1", aux_out="",
    rot=1, wsw=1, xrot=0, touch3=0,
    wflag=0,
    keep=0,
    chain=1,
    ilv="",
    early="",
    xsplit=0,
    ochain=1,
    tlb="",
    tlbat="11,43",
    help=0,
    helpat=19,
    l2pf="",
    pfpos="b",
    frep=1,
    keep2=1,
    smx=1,
    klate="32,33,34,35",
    kcut=6,
    nearly=3,
    slag="1,1",
    shift=0,
    al=0,
    wgmap=0,
    numa=0,
    ppub=0,
    nolag=0,
    omap=1,
    onepoll=1,
    ppoll=0,
    sleep=0,
    eg=0,
    cpf=2,
    cntst=0,
    rdy="11,27,50",
    stamps=0,
    abl="",
)

EX = 131072
LSUM = 28672
OOB = 0x80000000
FLAGS = 0xE00000
SPIN_MAX = 1 << 20

S_X, S_K, S_V, S_WQ, S_WO, S_WS, S_FL = 8, 12, 16, 20, 24, 28, 32
S_DBG = S_X
sW, sBR, sB, sH, sWSW, sT0, sT1, sT2, sSOFF, sM4096, sM1024, sHP = range(58, 70)
sC = 70
sWQP, sWOP, sKP = 74, 76, 78
sSL, sWOJ = 80, 84
sKVOFF = 88
sOUT, sDBGP, sWSP = 92, 94, 56
sSTAMP = 36

vWqD, vKD, vVD, vWoD = 1, 2, 4, 5
vWqR, vKR, vVR, vWoR = 12, 13, 15, 19
vExOwn, vQW, vOW, vExQ, vExOb, vSt, vRdy = 23, 27, 28, 29, 30, 31, 36
vRL, vLead, vT2, vT3 = 32, 37, 38, 39
vPF = 39
vCV, vG1, vP, vS = 40, 48, 64, 128
vQ = 64
vMC, vM, vL, vSUM, vT = 112, 124, 40, 48, 56
vRed, vSq = 1, 2
aX, aPP, aB2, aF = 0, 0, 192, 224


def srd(n):
    return f"s[{n}:{n + 3}]"


def pair(n):
    return f"v[{n}:{n + 1}]"


def bcast(reg, nsrc):
    k = reg & 1
    lo = ",".join(["0"] * (nsrc - 1) + [str(k)])
    hi = ",".join(["1"] * (nsrc - 1) + [str(k)])
    return pair(reg & ~1), f"op_sel:[{lo}] op_sel_hi:[{hi}]"


def tile_list():
    t = [("x", 0, i) for i in range(4)]
    for j in range(4):
        t += [("wq", j, i) for i in range(4)] + [("k", j, i) for i in range(4)]
    for j in range(4):
        t += [("v", j, i) for i in range(4)] + [("wo", j, i) for i in range(4)]
    return t


TILES = tile_list()


def default_spec(cfg, kind, i):
    return cfg[{"k": "ks", "v": "vs", "wq": "qs", "wo": "os"}[kind]].split(",")[i]


class Gen:
    def __init__(self, cfg):
        self.c = cfg
        self.o = []
        self.issued = 0
        self.nstamp = 0
        self.vm = []
        self.sched = self.make_sched(cfg)

    def e(self, *lines):
        for ln in lines:
            ins = I(ln) if isinstance(ln, str) else ln
            if ins.kind == "vmem" and (ins.load or self.c["cntst"]):
                self.vm.append(getattr(ins, "tag", None))
            self.o.append(ins)

    def eg(self, groups):
        for g in groups:
            self.e(*g)

    def stamp(self):
        if self.c["stamps"] and self.nstamp < 10:
            r = sSTAMP + 2 * self.nstamp
            self.e(f"s_memrealtime s[{r}:{r + 1}]")
            self.nstamp += 1

    def has_barrier(self, t):
        kind, _, i = TILES[t]
        if kind == "k":
            return i == 1 or self.c["kbar"]
        if kind == "wo":
            return i == 1 or t == 40 if self.c["ochain"] else i != 3
        return True

    def cover(self, t):
        kind, _, i = TILES[t]
        if kind == "wo" and self.c["ochain"]:
            return t - 1 if i == 0 else t - i + 3
        return t + 1 if kind == "wo" and i % 2 == 0 else t

    def slot_free(self, u, t):
        if u < 8:
            return True
        prev = u - 8
        kind, _, i = TILES[prev]
        if kind == "x":
            return i < 2 or t >= 4
        last_reader = prev + 1 if kind == "wo" and i % 2 == 0 else prev
        if kind == "wo" and self.c["ochain"]:
            last_reader = prev - i + 3
        if kind == "k" and TILES[u][0] == "k":
            return last_reader < t
        return any(self.has_barrier(b) for b in range(last_reader + 1, t + 1))

    def make_sched(self, cfg):
        order = "fslmb"
        over = dict(p.split(":") for p in cfg["over"].split("/") if p)
        sched = {}
        last = (3, 0)
        for u in range(cfg["pre"] + 1, len(TILES)):
            kind, _, i = TILES[u]
            spec = over.get(str(u)) or default_spec(cfg, kind, i)
            at = (min(63, u - int(spec[:-1])), order.index(spec[-1]))
            while not self.slot_free(u, at[0]):
                at = (at[0] + 1, 0)
            at = max(at, last)
            assert at[0] < u - 1
            assert not (cfg["ochain"] and kind == "wo") or at[0] <= u - i
            last = at
            sched.setdefault(at[0], {}).setdefault(order[at[1]], []).append(u)
        return sched

    def dma_at(self, t, pos):
        g = []
        for u in self.sched.get(t, {}).get(pos, []):
            assert u == self.issued
            g += self.dma_groups(u)
            self.issued += 1
        for item in self.c["l2pf"].split("/"):
            if item and int(item.split(":")[0]) == t and pos == self.c["pfpos"]:
                kind, j, i = TILES[int(item.split(":")[1])]
                g.append([I(f"s_add_u32 s6, s{sSL + j}, {i * 65536}"),
                          I(f"buffer_load_dword v{vT2}, v{vPF}, {srd(S_K if kind == 'k' else S_V)}, s6 offen")])
        return g

    def younger(self, tag):
        last = max(k for k, x in enumerate(self.vm) if x == tag)
        return len(self.vm) - 1 - last

    def sync(self, t, slot=None, upto=None, barrier=None):
        slot = t - 4 if slot is None else slot
        upto = self.cover(t) if upto is None else upto
        barrier = self.has_barrier(t) if barrier is None else barrier
        fine = self.c["stamps"] == 2 and slot >= 0
        if fine:
            self.e("s_memtime s[96:97]")
        if self.c["al"]:
            self.e(f".p2align {self.c['al']}")
            if not barrier:
                self.e("s_nop 0")
        self.e(f"s_waitcnt vmcnt({self.younger(upto)}) lgkmcnt(0)")
        if fine:
            self.e(f"v_writelane_b32 v{vT2}, s96, {slot}")
            if slot > 0:
                self.e(f"v_writelane_b32 v{vT3}, s98, {slot - 1}")
        if barrier:
            self.e("s_barrier")
        if fine:
            self.e("s_memtime s[98:99]")

    def make_srd(self, dst, pa, pb, off, nrec):
        self.e(f"s_cmp_eq_u32 s{sBR}, 0",
               f"s_cselect_b32 s{dst}, s{pa}, s{pb}",
               f"s_cselect_b32 s{dst + 1}, s{pa + 1}, s{pb + 1}",
               f"s_add_u32 s{dst}, s{dst}, s{off}",
               f"s_addc_u32 s{dst + 1}, s{dst + 1}, 0",
               f"s_mov_b32 s{dst + 2}, {nrec}",
               f"s_mov_b32 s{dst + 3}, 0x00020000")

    def x_dma(self, n):
        i, u = divmod(n, 4)
        base = (EX if i < 2 else 0) + i * 16384
        if self.c["xrot"]:
            if u == 0:
                g = [f"s_add_u32 s6, s7, {i}", "s_and_b32 s6, s6, 3",
                     f"s_mul_i32 s{sSOFF}, s6, {16 * 896}",
                     "s_cmp_lt_u32 s6, 2", f"s_cselect_b32 s5, {EX}, 0",
                     "s_lshl_b32 s6, s6, 14", f"s_add_u32 s5, s5, s{sT2}", "s_add_u32 m0, s5, s6"]
            else:
                g = ["s_add_u32 m0, m0, 32"]
        else:
            g = [f"s_add_u32 m0, s{sT2}, {base + 32 * u}"]
            if u == 0:
                g.append(f"s_mov_b32 s{sSOFF}, {i * 16 * 896}")
        ld = I(f"buffer_load_dwordx4 v41, {srd(S_X)}, s{sSOFF} offen offset:{896 * u} {self.c['aux_x']} lds")
        ld.tag = i
        return g + [ld]

    def prologue(self):
        c = self.c
        e = self.e
        e("s_cmp_ge_u32 s2, 256", "s_cbranch_scc1 L_main_end")
        e("s_load_dwordx16 s[36:51], s[0:1], 0",
          "s_load_dwordx4 s[52:55], s[0:1], 64",
          f"s_load_dwordx4 s[{sOUT}:{sOUT + 3}], s[0:1], 80",
          f"s_load_dwordx2 s[{sWSP}:{sWSP + 1}], s[0:1], 96")
        if c["stamps"]:
            e("s_memrealtime s[98:99]", "s_memtime s[100:101]")
        e("v_lshrrev_b32 v40, 6, v0", "v_and_b32 v0, 63, v0", f"v_readfirstlane_b32 s{sW}, v40")
        if c["wgmap"] == 1:
            e(f"s_and_b32 s{sBR}, s2, 1",
              "s_and_b32 s3, s2, 6", "s_bfe_u32 s4, s2, 0x10004", "s_or_b32 s3, s3, s4",
              f"s_lshr_b32 s{sB}, s2, 5")
        elif c["wgmap"] == 2:
            e("s_and_b32 s3, s2, 7",
              f"s_bfe_u32 s{sBR}, s2, 0x10004",
              f"s_lshr_b32 s{sB}, s2, 5")
        elif c["wgmap"] == 3:
            e("s_and_b32 s3, s2, 7",
              f"s_lshr_b32 s{sBR}, s2, 7", f"s_xor_b32 s{sBR}, s{sBR}, 1",
              f"s_bfe_u32 s{sB}, s2, 0x30004")
        else:
            e("s_and_b32 s3, s2, 7",
              f"s_lshr_b32 s{sBR}, s2, 7",
              f"s_bfe_u32 s{sB}, s2, 0x30004")
        e(f"s_bfe_u32 s{sHP}, s2, 0x10003",
          f"s_mul_i32 s{sT0}, s{sW}, {4 * 896}",
          f"v_lshl_add_u32 v41, v0, 4, s{sT0}",
          f"s_mul_i32 s{sT1}, s{sB}, 57344",
          f"s_mul_i32 s{sT2}, s{sW}, {4 * 928}",
          f"s_lshl1_add_u32 s{sH}, s3, s{sHP}",
          f"s_lshl_b32 s{sT0}, s{sH}, 9")
        if c["cpf"]:
            n = c["cpf"]
            e("; read two lines of this kernel's code so that later instruction fetches hit L2")
            e("s_getpc_b64 s[4:5]", "L_pc_base:",
              "s_lshr_b32 s6, s2, 3", f"s_lshl2_add_u32 s6, s6, s{sW}",
              f"s_mul_i32 s6, s6, {n}",
              "v_add_u32 v42, s6, v0",
              "v_lshlrev_b32 v42, 7, v42",
              "v_min_u32 v42, L_main_end-L_pc_base, v42",
              "v_mov_b32 v43, s5",
              "v_add_co_u32 v42, vcc, s4, v42",
              "v_addc_co_u32 v43, vcc, 0, v43, vcc",
              f"s_mov_b64 exec, {(1 << n) - 1}",
              f"global_load_dword v{vRdy}, v[42:43], off",
              "s_mov_b64 exec, -1")
        if c["xrot"] == 1:
            e("s_mov_b32 s7, s3")
        if c["xrot"] == 2:
            e(f"s_lshl1_add_u32 s7, s{sHP}, s3")
        if c["xrot"] == 3:
            e("s_lshl_b32 s7, s3, 1")
        if c["touch3"]:
            e(f"s_mul_i32 s6, s{sB}, 56", f"s_mul_i32 s5, s{sW}, 14", "s_add_u32 s6, s6, s5",
              "s_lshl_b32 s6, s6, 13", "s_add_u32 s6, s6, 384",
              f"s_cmp_eq_u32 s{sHP}, 0", f"s_cselect_b32 s6, s6, 0x{OOB:x}",
              f"v_lshl_add_u32 v{vLead}, v0, 13, s6")
        e("s_waitcnt lgkmcnt(0)")
        self.make_srd(S_X, 36, 46, sT1, 57344)
        e("s_mov_b32 exec_hi, 0x00ffffff")
        ilv = [int(x) for x in c["ilv"].split(",")] if c["ilv"] else None
        nfirst = 4 * min(x for x in ilv + [4] if x <= 4) if ilv else 11
        for n in range(nfirst):
            e(*self.x_dma(n))
        e("s_mov_b32 exec_hi, -1")
        self.make_srd(S_WQ, 42, 52, sT0, 0)
        e(f"s_sub_u32 s{S_WQ + 2}, 3670016, s{sT0}")
        if c["touch3"]:
            e("s_mov_b64 exec, 0x3fff",
              f"buffer_load_dword v{vLead}, v{vLead}, {srd(S_WQ)}, 0 offen",
              "s_mov_b64 exec, -1")
        e(f"s_lshl_b32 s{sM4096}, s{sW}, 12",
          f"s_lshl_b32 s{sM1024}, s{sW}, 10")
        e(f"s_lshr_b32 s{sWSW}, s{sB}, 2" if c["wsw"] else f"s_mov_b32 s{sWSW}, 0")
        e(f"s_mul_i32 s{sWQP}, s{sWSW}, {224 * 8192}",
          f"s_sub_u32 s{sWQP + 1}, {224 * 8192}, s{sWQP}")
        e(*self.slice_setup(0))
        e("v_lshrrev_b32 v42, 3, v0",
          "v_and_b32 v43, 7, v0",
          "v_and_b32 v44, 2, v42",
          f"s_and_b32 s6, s{sW}, 1", "s_lshl_b32 s6, s6, 2",
          "v_xor_b32 v44, v44, v43",
          "v_xor_b32 v44, s6, v44",
          f"s_lshl_b32 s6, s{sW}, 16",
          "v_lshl_add_u32 v45, v42, 13, s6",
          f"v_lshl_add_u32 v{vWqD}, v44, 4, v45")
        if ilv:
            for u in ilv[:2]:
                self.start_tile(u)
        e(f"s_lshl4_add_u32 s6, s{sB}, s{sH}", f"s_lshl3_add_u32 s5, s{sB}, s3",
          f"s_cmp_eq_u32 s{sBR}, 0", "s_cselect_b32 s6, s5, s6",
          f"s_lshl_b32 s{sKVOFF}, s6, 18")
        self.make_srd(S_K, 38, 48, sKVOFF, 262144)
        e("v_and_b32 v45, 1, v42",
          "v_lshrrev_b32 v46, 1, v42")
        if c["numa"]:
            src = {1: "s3", 2: f"s{sB}", 3: "0"}[c["numa"]]
            e("v_and_b32 v47, 1, v46", "v_lshl_add_u32 v45, v47, 3, v45",
              "v_lshrrev_b32 v47, 2, v42", "v_lshl_add_u32 v45, v47, 8, v45",
              f"s_and_b32 s6, {src}, 1", f"s_lshl_b32 s{sKP}, s6, 13", f"s_xor_b32 s{sKP + 1}, s{sKP}, 0x2000")
        else:
            e("v_lshl_add_u32 v45, v46, 3, v45")
        e(f"s_lshl_b32 s6, s{sW}, 14",
          "v_lshl_add_u32 v45, v45, 9, s6",
          "v_and_b32 v44, 6, v42",
          "v_xor_b32 v44, v44, v43",
          f"v_lshl_add_u32 v{vVD}, v44, 4, v45",
          "v_xor_b32 v46, v46, v43",
          f"v_lshl_add_u32 v{vKD}, v46, 4, v45",
          f"v_xor_b32 v{vKD + 1}, 64, v{vKD}")
        if c["l2pf"]:
            assert c["stamps"] != 2
            e(f"s_lshl_b32 s6, s{sW}, 15", f"v_lshl_add_u32 v{vPF}, v0, 9, s6",
              "v_lshrrev_b32 v47, 5, v0", f"v_xor_b32 v47, s{sHP}, v47",
              f"s_xor_b32 s6, s{sBR}, 1", "v_and_b32 v47, s6, v47",
              f"v_lshl_or_b32 v{vPF}, v47, 31, v{vPF}")
        e("v_lshrrev_b32 v51, 4, v0",
          "v_and_b32 v57, 15, v0",
          "v_mul_u32_u24 v57, 928, v57",
          "v_lshl_add_u32 v57, v51, 4, v57",
          f"s_mul_i32 s6, s{sWSW}, 448",
          "v_add_u32 v110, s6, v57",
          "s_sub_u32 s6, 448, s6",
          "v_add_u32 v111, s6, v57",
          f"v_add_u32 v108, {EX}, v110",
          f"v_add_u32 v109, {EX}, v111",
          "v_bfe_u32 v53, v0, 2, 2",
          "v_bfe_u32 v54, v0, 3, 2",
          f"v_xor_b32 v54, s{sW}, v54",
          "v_and_b32 v55, 3, v0",
          "v_lshl_add_u32 v54, v54, 2, v55",
          "v_lshl_add_u32 v56, v51, 3, v53",
          "v_lshl_add_u32 v56, v56, 4, v54",
          "v_lshlrev_b32 v56, 3, v56",
          f"v_add_u32 v{vWqR}, 0x10000, v56")
        if ilv:
            for u in ilv[2:]:
                self.start_tile(u)
            self.issued = max(ilv) + 1
        else:
            e("s_mov_b32 exec_hi, 0x00ffffff")
            for n in range(11, 16):
                e(*self.x_dma(n))
            e("s_mov_b32 exec_hi, -1")
            self.issued = 4
        blocks = [int(x) for x in c["early"].split(",") if x]
        setup = []
        for t in blocks:
            saved, self.o = self.o, []
            self.deferred(t, True)
            setup += self.o
            self.o = saved
        groups = []
        while self.issued <= c["pre"]:
            groups += self.dma_groups(self.issued)
            self.issued += 1
        cuts = [k for k in range(len(setup) + 1)
                if k == len(setup) or not any(setup[k].text.startswith(p) for p in ("s_cselect", "s_addc"))]
        done = 0
        for n, g in enumerate(groups):
            want = (n + 1) * len(setup) // len(groups)
            upto = max(k for k in cuts if k <= max(want, done))
            e(*setup[done:upto])
            done = max(done, upto)
            e(*g)
        e(*setup[done:])

    def start_tile(self, u):
        if u < 4:
            self.e("s_mov_b32 exec_hi, 0x00ffffff")
            for n in range(4 * u, 4 * u + 4):
                self.e(*self.x_dma(n))
            self.e("s_mov_b32 exec_hi, -1")
        else:
            if u in (5, 7):
                self.e(f"s_add_u32 s{sSOFF}, s{sWQP + (u - 4) // 2}, s{sSL}", f"s_add_u32 s{sSOFF}, s{sSOFF}, 0xc0000")
            self.eg(self.dma_groups(u))

    def slice_setup(self, j):
        if self.c["rot"]:
            ops = [f"s_add_u32 s6, s{sB}, {j}", "s_and_b32 s6, s6, 3"]
        else:
            ops = [f"s_mov_b32 s6, {j}"]
        return ops + [f"s_lshl_b32 s{sSL + j}, s6, 7", f"s_mul_i32 s{sWOJ + j}, s6, {64 * 896}"]

    def deferred(self, t, moved=False):
        c = self.c
        e = self.e
        if t == int(c["rdy"].split(",")[0]) and not moved:
            if c["frep"] == 1:
                e(f"v_mov_b32 v{vRdy}, 0", f"buffer_store_dword v{vRdy}, v{vLead}, {srd(S_FL)}, 0 offen sc1")
            else:
                e("v_mov_b32 v100, 0", "v_mov_b32 v101, 0", "v_mov_b32 v102, 0", "v_mov_b32 v103, 0",
                  "v_lshrrev_b32 v104, 2, v0", "v_and_b32 v105, 3, v0", "v_lshlrev_b32 v105, 4, v105",
                  "v_lshl_add_u32 v104, v104, 8, v105",
                  f"v_and_b32 v105, 0x{OOB:x}, v{vLead}", "v_or_b32 v104, v104, v105",
                  f"buffer_store_dwordx4 v[100:103], v104, {srd(S_FL)}, 0 offen sc1")
        if t == 8 and c["stamps"]:
            e(f"s_mov_b32 s{sSTAMP}, s90", f"s_mov_b32 s{sSTAMP + 1}, s91",
              f"s_mov_b32 s{sSTAMP + 2}, s72", f"s_mov_b32 s{sSTAMP + 3}, s73")
            self.nstamp = 2
        at = [int(x) for x in c["tlbat"].split(",")]
        todo = [k for k in c["tlb"] if (k in "vo" and t == at[0]) or (k in "sgfy" and t == at[1])] if not moved else []
        if todo:
            e("; warm address translations used later", "s_mov_b64 exec, 1")
            for k in todo:
                if k == "v":
                    e(f"buffer_load_dword v{vT2}, off, {srd(S_V)}, 0 nt")
                if k == "o":
                    e(f"buffer_load_dword v{vT2}, off, {srd(S_WO)}, 0", "s_mov_b32 s6, 229372",
                      f"buffer_load_dword v{vT2}, off, {srd(S_WO)}, s6")
                if k == "s":
                    e(f"buffer_load_dword v{vT2}, off, {srd(S_WS)}, 0 sc1")
                if k == "f":
                    e(f"buffer_load_dword v{vT2}, off, {srd(S_FL)}, 0 sc1")
                if k == "g":
                    e(f"s_lshl3_add_u32 s3, s{sBR}, s{sB}", f"s_mul_i32 s5, s3, {16 * 57344}",
                      f"s_add_u32 s{S_K}, s{sWSP}, s5", f"s_addc_u32 s{S_K + 1}, s{sWSP + 1}, 0",
                      f"s_mov_b32 s{S_K + 2}, {16 * 57344}", f"s_mov_b32 s6, {16 * 57344 - 4}",
                      f"buffer_load_dword v{vT2}, off, {srd(S_K)}, 0 sc1",
                      f"buffer_load_dword v{vT2}, off, {srd(S_K)}, s6 sc1")
                if k == "y":
                    e(f"s_mov_b32 s{S_WQ}, s{sOUT}", f"s_mov_b32 s{S_WQ + 1}, s{sOUT + 1}", f"s_mov_b32 s{S_WQ + 2}, 917504",
                      f"s_mul_i32 s6, s2, 3584",
                      f"buffer_load_dword v{vT2}, off, {srd(S_WQ)}, s6 sc1")
            e("s_mov_b64 exec, -1")
        if not moved and str(t) in c["early"].split(","):
            return
        if t == 4:
            e("; key fragment and exchange addresses")
            e("v_and_b32 v100, 15, v0", "v_lshrrev_b32 v101, 4, v0",
              f"v_lshl_add_u32 v102, v100, 7, s{sM4096}",
              "v_bfe_u32 v103, v0, 1, 3",
              "v_xor_b32 v103, v103, v101",
              f"v_lshl_add_u32 v{vKR}, v103, 4, v102",
              f"v_xor_b32 v{vKR + 1}, 64, v{vKR}",
              f"s_mov_b32 s6, {EX}",
              f"v_lshl_add_u32 v{vExQ}, v0, 4, s6",
              f"s_lshr_b32 s5, s{sW}, 1", "s_lshl_b32 s5, s5, 12", "s_add_u32 s6, s6, s5",
              f"s_and_b32 s5, s{sW}, 1",
              "s_lshl3_add_u32 s7, s5, s6",
              f"v_lshl_add_u32 v{vOW}, v0, 4, s7",
              "s_lshl_b32 s5, s5, 9", "s_add_u32 s6, s6, s5",
              "v_lshrrev_b32 v102, 5, v0",
              "v_lshl_add_u32 v102, v102, 4, v100",
              "v_and_b32 v103, 1, v101",
              "v_lshl_add_u32 v102, v102, 1, v103",
              f"v_lshl_add_u32 v{vQW}, v102, 3, s6")
            e(*self.slice_setup(1))
        if t == 7 and c["help"]:
            e(f"s_mul_i32 s6, s{sH}, 229376", "s_add_u32 s96, s54, s6", "s_addc_u32 s97, s55, 0",
              "s_mov_b32 s98, 229376", "s_mov_b32 s99, 0x00020000")
        if t == c["helpat"] and c["help"]:
            n = c["help"]
            e(f"s_mul_i32 s6, s{sW}, {n * 128}", f"s_add_u32 s6, s6, s{sWOP}", f"s_add_u32 s6, s6, s{sWOJ}",
              f"s_cmp_eq_u32 s{sBR}, 0", f"s_cselect_b32 s6, s6, 0x{OOB:x}",
              "v_lshl_add_u32 v100, v0, 7, s6",
              f"s_mov_b32 exec_lo, 0x{((1 << n) - 1) & 0xffffffff:x}", f"s_mov_b32 exec_hi, 0x{((1 << n) - 1) >> 32:x}",
              f"buffer_load_dword v{vT2}, v100, s[96:99], 0 offen",
              "s_mov_b64 exec, -1")
        if t == 7:
            e("; remaining descriptors")
            self.make_srd(S_V, 40, 50, sKVOFF, 262144)
            e(f"s_mul_i32 s{sT0}, s{sH}, 229376")
            self.make_srd(S_WO, 44, 54, sT0, 229376)
            e(f"s_lshl3_add_u32 s{sT1}, s{sBR}, s{sB}", f"s_lshl4_add_u32 s6, s{sT1}, s{sH}",
              f"s_mul_i32 s{sT0}, s6, 57344",
              f"s_add_u32 s{S_WS}, s{sWSP}, s{sT0}", f"s_addc_u32 s{S_WS + 1}, s{sWSP + 1}, 0",
              f"s_mov_b32 s{S_WS + 2}, 57344", f"s_mov_b32 s{S_WS + 3}, 0x00020000")
            e(f"s_lshl_b32 s6, s{sT1}, 12", f"s_add_u32 s6, s6, 0x{FLAGS:x}")
            if c["wflag"]:
                e(f"s_add_u32 s6, s6, s{sM1024}", f"s_lshl2_add_u32 s{sT1}, s{sT1}, s{sW}")
            e(f"s_add_u32 s{S_FL}, s{sWSP}, s6", f"s_addc_u32 s{S_FL + 1}, s{sWSP + 1}, 0",
              f"s_mov_b32 s{S_FL + 2}, {64 if c['frep'] == 1 else 256 * c['frep']}", f"s_mov_b32 s{S_FL + 3}, 0x00020000",
              f"s_lshl_b32 s6, s{sT1}, 2",
              f"s_add_u32 s{S_DBG}, s{sDBGP}, s6", f"s_addc_u32 s{S_DBG + 1}, s{sDBGP + 1}, 0",
              f"s_mov_b32 s{S_DBG + 2}, 4",
              f"s_mov_b32 s6, s{sH}" if c["wflag"] else f"s_or_b32 s6, s{sH}, s{sW}", "s_cmp_eq_u32 s6, 0",
              f"s_cselect_b32 s6, 0, 0x{OOB:x}",
              f"v_lshl_add_u32 v{vLead}, v0, 2, s6")
        if t == 9:
            e("; value / output-weight fragment addresses")
            e(*self.slice_setup(2))
            e(*self.slice_setup(3))
            e("v_lshrrev_b32 v100, 2, v0",
              "v_bfe_u32 v101, v0, 3, 2",
              "v_and_b32 v102, 3, v0",
              f"v_xor_b32 v103, s{sW}, v101",
              "v_lshl_add_u32 v103, v103, 2, v102",
              "v_lshl_add_u32 v103, v100, 4, v103",
              f"s_add_u32 s6, s{sM4096}, 0x10000",
              f"v_lshl_add_u32 v{vVR}, v103, 3, s6")
            for p in range(1, 4):
                e(f"v_xor_b32 v{vVR + p}, {p * 4096}, v{vVR}")
            e("v_mul_u32_u24 v100, 896, v100",
              "v_lshl_add_u32 v100, v102, 3, v100",
              f"s_mul_i32 s6, s{sW}, 7")
            for m in range(4):
                e("v_xor_b32 v103, s6, v101", f"v_lshl_add_u32 v{vWoR + m}, v103, 5, v100")
                if m < 3:
                    e("s_add_u32 s6, s6, 1")
            e(f"v_add_u32 v{vExOwn}, s{sM4096}, v{vExQ}")
            for p in range(1, 4):
                e(f"v_xor_b32 v{vExOwn + p}, {p * 4096}, v{vExOwn}")
            e(f"s_mul_i32 s6, s{sW}, 14336",
              f"v_lshl_add_u32 v{vSt}, v0, 4, s6")
        if t == 17:
            e("; output-weight load offsets")
            cbits = struct.unpack("<I", struct.pack("<f", math.log2(math.e) / 16.0))[0]
            e(f"s_mov_b32 s{sC}, 0x{cbits:08x}", f"s_mov_b32 s{sC + 1}, 0x{cbits:08x}",
              f"s_mul_i32 s{sWOP}, s{sWSW}, {32 * 896}",
              f"s_sub_u32 s{sWOP + 1}, {32 * 896}, s{sWOP}",
              f"v_lshl_add_u32 v101, v0, 4, s{sM1024}")
            for u in range(7):
                e(f"v_add_u32 v102, {4096 * u}, v101",
                  "v_lshrrev_b32 v103, 8, v102",
                  "v_mul_u32_u24 v103, 147, v103",
                  "v_bfe_u32 v103, v103, 10, 2",
                  "v_lshlrev_b32 v103, 5, v103",
                  f"v_xor_b32 v{vWoD + u}, v103, v102")
        if t == 45 and c["keep2"]:
            e("; mask of this wave's output units that the workgroup reduces itself")
            e(f"s_and_b32 s5, s{sH}, 14", "s_lshl_b32 s5, s5, 1",
              f"s_mul_i32 s6, s{sW}, 7", f"s_sub_i32 s{sWQP + 1}, s5, s6",
              f"s_min_i32 s5, s{sWQP + 1}, 7", "s_lshl1_add_u32 s5, s5, 42",
              f"s_lshl_b32 s6, 0x55, s{sHP}", "s_mov_b32 s7, 0",
              "s_lshl_b64 s[6:7], s[6:7], s5",
              f"s_bfe_u32 s{sWQP}, s7, 0xe000a")
        if t == 33:
            e("; cross-wave reduction addresses; attention-output operand addresses")
            assert self.issued > 35
            e(f"s_lshl_b32 s6, s{sW}, 2",
              f"v_lshl_add_u32 v{vRed}, v0, 4, s6",
              f"v_and_b32 v{vSq}, 15, v0",
              f"v_lshlrev_b32 v{vSq}, 4, v{vSq}",
              f"v_add_u32 v{vSq + 1}, {EX + 16384}, v{vSq}",
              f"s_lshl_b32 s6, s{sWSW}, 12",
              f"v_add_u32 v{vExQ}, s6, v{vExQ}",
              f"v_xor_b32 v{vExOb}, 0x1000, v{vExQ}")

    def dma_groups(self, t):
        c = self.c
        kind, j, i = TILES[t]
        p, q = i >> 1, i & 1
        g = []
        if kind in ("k", "v"):
            slot = (t % 8) * 16384
            head = [f"s_add_u32 m0, s{sM4096}, {slot}",
                    f"s_add_u32 s{sSOFF}, s{sSL + j}, {i * 65536}"]
            if c["numa"]:
                head[1] = f"s_add_u32 s{sSOFF}, s{sSOFF}, 0x10000" if q else f"s_add_u32 s{sSOFF}, s{sSL + j}, s{sKP + p}"
            for u in range(4):
                vo = vKD + (u & 1) if kind == "k" else vVD
                s = S_K if kind == "k" else S_V
                ld = f"buffer_load_dwordx4 v{vo}, {srd(s)}, s{sSOFF} offen offset:{1024 * u} {c['aux_kv']} lds"
                g.append([I(x) for x in (head if u == 0 else []) + [ld]])
        else:
            base = ((t - q) % 8) * 16384
            for u in (range(4, 7) if q else range(4)):
                head = [f"s_add_u32 m0, s{sM1024}, {base + 4096 * u}"]
                if kind == "wq":
                    head.append(f"s_add_u32 s{sSOFF}, s{sSOFF}, 0x40000" if u else f"s_add_u32 s{sSOFF}, s{sWQP + p}, s{sSL + j}")
                    ld = f"buffer_load_dwordx4 v{vWqD}, {srd(S_WQ)}, s{sSOFF} offen {c['aux_w']} lds"
                else:
                    if u == 0:
                        head.append(f"s_add_u32 s{sSOFF}, s{sWOP + p}, s{sWOJ + j}")
                    ld = f"buffer_load_dwordx4 v{vWoD + u}, {srd(S_WO)}, s{sSOFF} offen {c['aux_w']} lds"
                g.append([I(x) for x in head + [ld]])
        for grp in g:
            grp[-1].tag = t
        return g

    @staticmethod
    def frag(t, n):
        return aF + 16 * (t & 1) + 4 * n

    @staticmethod
    def wo_read(dst, n, p, h):
        off = p * 32768 + h * 14336 + (n >> 2) * 128
        return I(f"ds_read_b64_tr_b16 {rng('a', dst, 2)}, v{vWoR + (n & 3)} offset:{off}")

    def read_groups(self, t):
        kind, j, i = TILES[t]
        p, q = i >> 1, i & 1
        g = []
        if kind == "wq":
            for n, k in enumerate(range(4, 7) if q else range(4)):
                for h in range(2):
                    g.append([I(f"ds_read_b64_tr_b16 {rng('a', self.frag(t, n) + 2 * h, 2)}, v{vWqR} offset:{p * 32768 + k * 4096 + h * 512}")])
        elif kind == "k":
            for k in range(2):
                for kt in range(2):
                    g.append([I(f"ds_read_b128 {rng('a', self.frag(t, 2 * k + kt), 4)}, v{vKR + k} offset:{i * 16384 + kt * 2048}")])
        elif kind == "v":
            for pp in range(4):
                for h in range(2):
                    g.append([I(f"ds_read_b64_tr_b16 {rng('a', self.frag(t, pp) + 2 * h, 2)}, v{vVR + pp} offset:{i * 16384 + h * 2048}")])
        elif kind == "wo" and self.c["ochain"]:
            for m, n in enumerate(range(2 * i, min(7, 2 * i + 2))):
                for pp in range(2):
                    for h in range(2):
                        g.append([self.wo_read(self.frag(t, 2 * m + pp) + 2 * h, n, pp, h)])
        elif kind == "wo":
            for m, n in enumerate(range(4, 7) if q else range(4)):
                for h in range(2):
                    g.append([self.wo_read(self.frag(t, m) + 2 * h, n, p, h)])
        return g

    @staticmethod
    def mfma(d, a, b, zero=False):
        dd = rng('v', d, 4)
        return I(f"v_mfma_f32_16x16x32_bf16 {dd}, {rng('a', a, 4)}, {b}, {'0' if zero else dd}")

    def order(self, nouter, ninner):
        return [(o, k if o % 2 == 0 else ninner - 1 - k) for o in range(nouter) for k in range(ninner)]

    def mfmas(self, t):
        kind, j, i = TILES[t]
        p, q = i >> 1, i & 1
        chain = self.c["chain"]
        m = []
        seen = set()

        def add(d, a, b, fresh):
            m.append(self.mfma(d, a, b, fresh and d not in seen))
            seen.add(d)
        if kind == "wq":
            ks = list(range(4, 7) if q else range(4))
            seq = self.order(4, len(ks)) if chain else [(qt, n) for n in range(len(ks)) for qt in range(4)]
            for qt, n in seq:
                add(vG1 + 4 * qt, self.frag(t, n), rng('a', aX + 16 * (7 * p + ks[n]) + 4 * qt, 4), i == 0)
        elif kind == "k":
            if chain:
                seq = [(o // 2, (o % 2) ^ ((o // 2) % 2), k) for o, k in self.order(8, 2)]
            else:
                seq = [(qt, kt, k) for k in range(2) for kt in range(2) for qt in range(4)]
            for qt, kt, k in seq:
                add(vS + 32 * i + 8 * qt + 4 * kt, self.frag(t, 2 * k + kt), rng('v', vQ + 16 * k + 4 * qt, 4), j == 0)
        elif kind == "v":
            seq = self.order(4, 4) if chain else [(qt, pp) for pp in range(4) for qt in range(4)]
            for qt, pp in seq:
                b = rng('v', vP + 16 * i + 4 * qt, 4) if pp == 0 else rng('a', aPP + 48 * i + 16 * (pp - 1) + 4 * qt, 4)
                add(vG1 + 4 * qt, self.frag(t, pp), b, i == 0)
        elif kind == "wo" and self.c["ochain"]:
            ns = list(range(2 * i, min(7, 2 * i + 2)))
            for o, pp in self.order(4 * len(ns), 2):
                mm, qt = o // 4, (o % 4 if (o // 4) % 2 == 0 else 3 - o % 4)
                add(vS + 16 * ns[mm] + 4 * qt, self.frag(t, 2 * mm + pp), rng('a', aB2 + 16 * pp + 4 * qt, 4), j == 0)
        elif kind == "wo":
            ns = list(range(4, 7) if q else range(4))
            seq = self.order(len(ns), 4) if chain else [(mm, qt) for mm in range(len(ns)) for qt in range(4)]
            for mm, qt in seq:
                add(vS + 16 * ns[mm] + 4 * qt, self.frag(t, mm), rng('a', aB2 + 16 * p + 4 * qt, 4), j == 0 and p == 0)
        return m

    @staticmethod
    def counted_waits(seq):
        out = []
        pending = []
        for ins in seq:
            need = [k for k, r in enumerate(pending) if r.writes & ins.reads]
            if need and ins.kind != "ds":
                left = len(pending) - 1 - max(need)
                out.append(I(f"s_waitcnt lgkmcnt({min(left, 14)})"))
                pending = pending[max(need) + 1:]
            out.append(ins)
            if ins.kind == "ds":
                pending.append(ins)
        return out

    def max_ops(self, i, dst):
        ops = []
        for step in range(4):
            for qt in range(4):
                r = vS + 32 * i + 8 * qt
                d = dst + qt
                if step == 0:
                    ops.append(I(f"v_max3_f32 v{d}, v{r}, v{r + 1}, v{r + 2}"))
                elif step < 3:
                    ops.append(I(f"v_max3_f32 v{d}, v{r + 2 * step + 1}, v{r + 2 * step + 2}, v{d}"))
                else:
                    ops.append(I(f"v_max_f32 v{d}, v{r + 7}, v{d}"))
        ops += [I(f"v_mul_f32 v{dst + qt}, s{sC}, v{dst + qt}") for qt in range(4)]
        return ops

    def exp_ops(self, i, m, qts=range(4)):
        g = []
        for qt in qts:
            src, mod = bcast(m + qt, 3)
            for half in range(2):
                r = vS + 32 * i + 8 * qt + 4 * half
                g.append([I(f"v_pk_fma_f32 {pair(r + x)}, {pair(r + x)}, s[{sC}:{sC + 1}], {src} {mod} neg_lo:[0,0,1] neg_hi:[0,0,1]")
                          for x in (0, 2)] + [I(f"v_exp_f32 v{r + x}, v{r + x}") for x in range(2)])
                g.append([I(f"v_exp_f32 v{r + x}, v{r + x}") for x in range(2, 4)])
        return g

    def sum_ops(self, i, dst):
        ops = []
        for step in range(4):
            for qt in range(4):
                r = vS + 32 * i + 8 * qt
                tmp = vT + 2 * qt
                if step == 0:
                    ops.append(I(f"v_pk_add_f32 {pair(tmp)}, {pair(r)}, {pair(r + 2)}"))
                elif step < 3:
                    ops.append(I(f"v_pk_add_f32 {pair(tmp)}, {pair(tmp)}, {pair(r + 2 + 2 * step)}"))
                else:
                    ops.append(I(f"v_add_f32 v{dst + qt}, v{tmp}, v{tmp + 1}"))
        return ops

    def early_exp(self, i):
        m = vMC + 4 * i
        g = [[x] for x in self.max_ops(i, m)] + self.exp_ops(i, m)
        if i < 2:
            g += [[x] for x in self.sum_ops(i, vSUM + 4 * i)]
        return g

    def pack_ops(self, i):
        ops = []
        for qt in range(4):
            r = vS + 32 * i + 8 * qt
            p = vP + 16 * i + 4 * qt
            if i < self.c["nearly"]:
                src, mod = bcast(vMC + 4 * i + qt, 2)
                ops += [I(f"v_pk_mul_f32 {pair(r + x)}, {pair(r + x)}, {src} {mod}") for x in range(0, 8, 2)]
            for x in range(0, 8, 2):
                if i >= 2:
                    ops.append(I(f"v_pk_add_f32 {pair(vL + 2 * qt)}, {pair(vL + 2 * qt)}, {pair(r + x)}"))
                ops.append(I(f"v_cvt_pk_bf16_f32 v{p + x // 2}, v{r + x}, v{r + x + 1}"))
        return ops

    def p_writes(self, i):
        return [[I(f"ds_write_b128 v{vExOwn}, {rng('v', vP + 16 * i + 4 * qt, 4)} offset:{(i & 1) * 16384 + qt * 1024}")]
                for qt in range(4)]

    def p_reads(self, i):
        return [[I(f"ds_read_b128 {rng('a', aPP + 48 * i + 16 * (pp - 1) + 4 * qt, 4)}, v{vExOwn + pp} offset:{(i & 1) * 16384 + qt * 1024}")]
                for qt, pp in ([(qt, pp) for qt in range(4) for pp in range(1, 4)] if self.c["chain"]
                               else [(qt, pp) for pp in range(1, 4) for qt in range(4)])]

    def lane_reduce(self, op, r):
        self.e(f"v_permlane32_swap_b32 v{r}, v{r + 2}",
               f"v_permlane32_swap_b32 v{r + 1}, v{r + 3}",
               f"{op} v{r}, v{r}, v{r + 2}",
               f"{op} v{r + 1}, v{r + 1}, v{r + 3}",
               f"v_permlane16_swap_b32 v{r}, v{r + 1}",
               f"{op} v{r}, v{r}, v{r + 1}")

    def publish_groups(self, scale):
        g = []
        for qt in range(4):
            r = vG1 + 4 * qt
            ops = []
            if scale:
                src, mod = bcast(vRL + qt, 2)
                ops += [I(f"v_pk_mul_f32 {pair(r + x)}, {pair(r + x)}, {src} {mod}") for x in (0, 2)]
            ops += [I(f"v_cvt_pk_bf16_f32 v{vCV + 2 * qt}, v{r}, v{r + 1}"),
                    I(f"v_cvt_pk_bf16_f32 v{vCV + 2 * qt + 1}, v{r + 2}, v{r + 3}")]
            g.append((ops, [I(f"ds_write_b64 v{vOW if scale else vQW}, {pair(vCV + 2 * qt)} offset:{qt * 1024}")]))
        return g

    def g1_publish(self, scale, skip=0):
        g = self.publish_groups(scale)[skip:]
        self.eg([ops for ops, _ in g] + [wr for _, wr in g])

    def with_publish(self, seq, mf, scale):
        per = len(mf) // 4
        out = list(seq)
        for qt, (ops, wr) in list(enumerate(self.publish_groups(scale)))[:3]:
            at = out.index(mf[per * (qt + 2) - 1]) + 1
            out[at:at] = ops + wr
        return out

    def b2_reads(self, kind):
        g = []
        qt_major = self.c["chain"] and (kind != "wo" or self.c["ochain"])
        for x in range(8):
            k, qt = (x % 2, x // 2) if qt_major else (x // 4, x % 4)
            if True:
                if kind == "k":
                    g.append([I(f"ds_read_b128 {rng('v', vQ + 16 * k + 4 * qt, 4)}, v{vExQ} offset:{k * 4096 + qt * 1024}")])
                else:
                    g.append([I(f"ds_read_b128 {rng('a', aB2 + 16 * k + 4 * qt, 4)}, v{vExOb if k else vExQ} offset:{qt * 1024}")])
        return g

    def weave(self, mf, front, reads, spread, late):
        if not mf:
            return sum(front + reads + spread + late, [])
        n = len(mf)
        d = self.c["dgap"]
        while d > 1 and d * (len(front) + len(late) + len(spread)) > n:
            d -= 1
        gaps = [[] for _ in range(n)]
        taken = set()

        def put(at, g):
            at = min(n - 1, max(0, at))
            gaps[at].append(g)
            taken.add(at)
        for k, g in enumerate(front):
            put(d * k, g)
        lo = d * len(front)
        hi = n - d * len(late)
        for k, g in enumerate(spread):
            put(lo + (2 * k + 1) * max(hi - lo, 0) // (2 * len(spread)), g)
        for k, g in enumerate(late):
            put(n - 1 - d * (len(late) - 1 - k), g)
        free = [k for k in range(n - 3) if k not in taken] or list(range(n))
        per = max(self.c["rpg"], -(-len(reads) // len(free)), 1)
        for k, g in enumerate(reads):
            gaps[free[k // per]].insert(k % per, g)
        out = []
        for m, gs in zip(mf, gaps):
            out.append(m)
            for g in gs:
                out += g
        return out

    def body(self):
        e = self.e
        c = self.c
        for _ in range(c["shift"]):
            e("s_nop 0")
        e("; x fragments")
        self.sync(3)
        if c["stamps"]:
            e("s_mov_b32 s90, s98", "s_mov_b32 s91, s99", "s_memrealtime s[72:73]")
        xr = []
        for k in range(14):
            for qt in range(4):
                va = (108 if qt < 2 else 110) + (k >= 7)
                xr.append([I(f"ds_read_b128 {rng('a', aX + 16 * k + 4 * qt, 4)}, v{va} offset:{qt * 16384 + (k % 7) * 64}")])
        later = {}
        if c["xsplit"]:
            keep = []
            for n, g in enumerate(xr):
                k, qt = divmod(n, 4)
                if qt < 2 and k >= 4:
                    later.setdefault(4 if k < 7 else 5 if k < 11 else 6, []).append(g)
                else:
                    keep.append(g)
            xr = keep
        self.eg(self.dma_at(3, "f") + xr[:28] + self.dma_at(3, "s") + self.dma_at(3, "l") + self.dma_at(3, "m") + xr[28:] + self.dma_at(3, "b"))
        for t in range(4, 64):
            kind, j, i = TILES[t]
            e(f"; step {t}: tile {kind}{j}_{i}")
            if t in (12, 36, 44, 60):
                self.stamp()
            kl = kind == "k" and (str(i) in c["klate"].split(",") and t < 32 or str(t) in c["klate"].split(","))
            self.sync(t, upto=t - 1 if kl else None)
            front = self.dma_at(t, "f")
            spread = self.dma_at(t, "s")
            late = self.dma_at(t, "l")
            if t == int(c["rdy"].split(",")[1]):
                spread.append([I(f"v_mov_b32 v{vRdy}, 1"),
                               I(f"buffer_store_dword v{vRdy}, v{vLead}, {srd(S_DBG)}, 0 offen sc1")])
            if t == int(c["rdy"].split(",")[2]):
                spread.append([I(f"buffer_load_dword v{vRdy}, off, {srd(S_DBG)}, 0 sc1")])
            reads = self.read_groups(t) + later.get(t, [])
            mf = self.mfmas(t - 1) if t > 4 and t != 36 else []
            if c["ochain"] and (kind, i) == ("wo", 0):
                reads = []
            piped = c["ppub"] and c["chain"] and (kind, i) in (("k", 0), ("wo", 0)) and t != 40 and not kl
            if kl and t in (34, 35):
                ex = self.early_exp(t - 34)
                self.eg(front)
                e(*interleave(mf, ex[:36]))
                self.eg(spread)
                e(f"s_waitcnt vmcnt({self.younger(t)})")
                self.eg(reads + ex[36:] + late)
            elif kl and i == 0:
                e(*self.weave(mf, front, [], spread, late))
            elif kl:
                cut = len(mf) - c["kcut"]
                head = (sum(self.b2_reads(kind), []) if i == 1 else []) + self.weave(mf[:cut], front, [], spread, [])
                e(*self.counted_waits(head))
                e(f"s_waitcnt vmcnt({self.younger(t)}) lgkmcnt(0)")
                e(*self.weave(mf[cut:], [], reads, [], late))
            elif (kind, i) in (("k", 1), ("wo", 1)):
                b2 = self.b2_reads(kind)
                if c["ochain"] and kind == "wo":
                    r0 = self.read_groups(t - 1)
                    b2 = r0[:4] + b2 + r0[4:]
                e(*self.counted_waits(sum(b2 + front, []) + self.weave(mf, [], reads, spread, late)))
            elif t in (34, 35):
                ex = self.early_exp(t - 34)
                e(*interleave(mf[:4], front + reads))
                e(*interleave(mf[4:], ex[:36]))
                self.eg(spread + ex[36:] + late)
            elif t == 36:
                self.softmax_head(front, reads, spread, late)
            elif t in (37, 38, 39) and c["smx"]:
                late_exp = {3: {1: [(3, (2, 3))]}, 2: {1: [(2, (2, 3)), (3, (0,))], 2: [(3, (1, 2, 3))]}}[c["nearly"]].get(i, [])
                valu = sum((sum(self.exp_ops(ti, vM, qs), []) for ti, qs in late_exp), []) + self.pack_ops(i)
                pr = self.p_reads(i - 1)
                self.eg(front)
                part = len(valu) // 5
                for k in range(4):
                    self.eg(pr[3 * k:3 * k + 3])
                    e(*valu[part * k:part * (k + 1)])
                e(*valu[part * 4:])
                wr = self.p_writes(i)
                if i == 3:
                    for qt in range(4):
                        e(f"v_add_f32 v{vRL + qt}, v{vL + 2 * qt}, v{vL + 2 * qt + 1}")
                    self.lane_reduce("v_add_f32", vRL)
                    wr[0] = [I(f"ds_write_b32 v{vRed}, v{vRL} offset:{LSUM}")] + wr[0]
                e("s_waitcnt lgkmcnt(0)")
                gaps = [[] for _ in mf]
                for k in range(4):
                    gaps[4 * k] += wr[k]
                    gaps[4 * k + 3 if k < 3 else 10] += reads[2 * k] + reads[2 * k + 1]
                dm = spread + late
                for k, g in enumerate(dm[:4]):
                    gaps[4 * k + 2 if k != 2 else 9] += g
                for m, g in zip(mf, gaps):
                    e(m, *g)
                self.eg(dm[4:])
            elif t in (37, 38, 39):
                self.eg(self.p_reads(i - 1) + front)
                if i == 1:
                    self.eg(self.exp_ops(3, vM, (2, 3)))
                e(*self.pack_ops(i))
                wr = self.p_writes(i)
                if i == 3:
                    for qt in range(4):
                        e(f"v_add_f32 v{vRL + qt}, v{vL + 2 * qt}, v{vL + 2 * qt + 1}")
                    self.lane_reduce("v_add_f32", vRL)
                    wr.insert(0, [I(f"ds_write_b32 v{vRed}, v{vRL} offset:{LSUM}")])
                e("s_waitcnt lgkmcnt(0)")
                e(*self.weave(mf, wr, reads, spread, late))
            elif t == 40:
                tmp = vS + 112
                lr = [[I(f"ds_read_b128 {rng('v', tmp + 4 * qt, 4)}, v{vSq} offset:{LSUM + qt * 256}")] for qt in range(4)]
                extra = []
                for qt in range(4):
                    r = tmp + 4 * qt
                    extra.append([I(f"v_add_f32 v{r}, v{r}, v{r + 1}"), I(f"v_add_f32 v{r + 2}, v{r + 2}, v{r + 3}")])
                for qt in range(4):
                    r = tmp + 4 * qt
                    extra.append([I(f"v_add_f32 v{r}, v{r}, v{r + 2}"), I(f"v_rcp_f32 v{vRL + qt}, v{r}")])
                seq = sum(self.p_reads(3) + front, []) + interleave(mf[:4], lr) + interleave(mf[4:10], reads) + interleave(mf[10:], extra)
                e(*self.counted_waits(seq))
                self.eg(spread + late)
            elif piped:
                e(*self.with_publish(self.weave(mf, front, reads, spread, late), mf, kind == "wo"))
            elif t == 63 and c["nolag"]:
                self.eg(reads + front + spread + late)
            else:
                e(*self.weave(mf, front, reads, spread, late))
            if t != 36:
                self.eg(self.dma_at(t, "m"))
            if (kind, i) in (("k", 0), ("wo", 0)):
                self.g1_publish(kind == "wo", 3 if piped else 0)
                if kl:
                    e(f"s_waitcnt vmcnt({self.younger(t)})")
                    self.eg(reads)
            if t == 62 and c["nolag"]:
                e("s_waitcnt lgkmcnt(0)", *self.mfmas(62))
            self.deferred(t)
            if t == 35:
                e("; last score tile and row maximum")
                e("s_waitcnt lgkmcnt(0)")
                mf = self.mfmas(t)
                e(*interleave(mf, self.early_exp(2) if c["nearly"] == 3 else [[x] for x in self.max_ops(2, vMC + 8)]))
                e(*self.max_ops(3, vM))
                for qt in range(4):
                    e(f"v_max3_f32 v{vM + qt}, v{vM + qt}, v{vMC + qt}, v{vMC + 4 + qt}")
                for qt in range(4):
                    e(f"v_max_f32 v{vM + qt}, v{vM + qt}, v{vMC + 8 + qt}")
                self.lane_reduce("v_max_f32", vM)
                e(f"v_add_u32 v{vT}, {EX + 16384}, v{vRed}",
                  f"ds_write_b32 v{vT}, v{vM}")
            self.eg(self.dma_at(t, "b"))
        assert self.issued == len(TILES)
        self.last_slice()
        self.fused_reduce()
        self.finish()

    def softmax_head(self, front, reads, spread, late):
        e = self.e
        tmp = 96
        for qt in range(4):
            e(f"ds_read_b128 {rng('v', tmp + 4 * qt, 4)}, v{vSq + 1} offset:{qt * 256}")
        self.eg(front + reads)
        e(f"s_waitcnt lgkmcnt({len(reads)})")
        for qt in range(4):
            r = tmp + 4 * qt
            e(f"v_max3_f32 v{r}, v{r}, v{r + 1}, v{r + 2}")
        for qt in range(4):
            r = tmp + 4 * qt
            e(f"v_max_f32 v{vM + qt}, v{r}, v{r + 3}")
        for x in range(4 * self.c["nearly"]):
            e(f"v_sub_f32 v{vMC + x}, v{vMC + x}, v{vM + x % 4}")
        for x in range(4 * self.c["nearly"]):
            e(f"v_exp_f32 v{vMC + x}, v{vMC + x}")
        for qt in range(4):
            e(f"v_mul_f32 v{vL + 2 * qt}, v{vSUM + qt}, v{vMC + qt}",
              f"v_mul_f32 v{vL + 2 * qt + 1}, v{vSUM + 4 + qt}, v{vMC + 4 + qt}")
        e(*self.pack_ops(0))
        ex = self.exp_ops(self.c["nearly"], vM, (0, 1))
        if self.c["smx"]:
            self.eg(spread)
            for k, wr in enumerate(self.p_writes(0)):
                self.eg([wr] + ex[2 * k:2 * k + 2])
            self.eg(late + self.dma_at(36, "m"))
        else:
            self.eg(spread + self.p_writes(0) + late + self.dma_at(36, "m") + ex)

    def last_slice(self):
        e = self.e
        e("; last value tile, then the last output-projection slice column block by column block")
        e("s_waitcnt lgkmcnt(0)")
        mf = self.mfmas(63)
        if self.c["ppub"] and self.c["chain"]:
            e(*self.with_publish(mf, mf, True))
            self.g1_publish(True, 3)
        else:
            e(*mf)
            self.g1_publish(True)
        self.sync(67, 60, 67, True)
        self.stamp()
        self.eg(self.b2_reads("last"))

        def reads(n):
            return [[self.wo_read(aF + 8 * (n % 3) + 4 * p + 2 * h, n, p, h)] for p in range(2) for h in range(2)]

        def stores(n):
            g = []
            for qp in range(2):
                u = 2 * n + qp
                d = vP + 4 * u
                r = vS + 16 * n + 8 * qp
                cv = [I(f"v_cvt_pk_bf16_f32 v{d + x}, v{r + 2 * x}, v{r + 2 * x + 1}") for x in range(4)]
                g += [cv[:2], cv[2:]]
                grp = []
                if self.c["keep2"]:
                    grp += [I(f"s_bitcmp1_b32 s{sWQP}, {u}"), I(f"s_cselect_b32 s{sSOFF}, s{sT2}, {(u // 4) * 4096}")]
                elif self.c["keep"]:
                    grp += [I(f"s_cmp_eq_u32 s{sH}, {u}"), I(f"s_cselect_b32 s{sSOFF}, s{sT2}, {(u // 4) * 4096}")]
                elif u % 4 == 0:
                    grp.append(I(f"s_mov_b32 s{sSOFF}, {u * 1024}"))
                grp.append(I(f"buffer_store_dwordx4 {rng('v', d, 4)}, v{vSt}, {srd(S_WS)}, s{sSOFF} offen offset:{(u % 4) * 1024} {self.c['aux_st']}"))
                g.append(grp)
            return g

        def blocks(lag):
            for n in range(7):
                e("s_waitcnt lgkmcnt(0)")
                mf = [self.mfma(vS + 16 * n + 4 * qt, aF + 8 * (n % 3) + 4 * p, rng('a', aB2 + 16 * p + 4 * qt, 4))
                      for qt, p in (self.order(4, 2) if self.c["chain"] else [(qt, p) for p in range(2) for qt in range(4)])]
                e(*interleave(mf[:2], reads(n + 1) if n < 6 else []))
                fill = []
                if n > 0:
                    fill += [g for g in stores(n - 1) if g[-1].kind != "vmem" or lag == 1]
                if lag > 1 and n >= lag:
                    fill += [g for g in stores(n - lag) if g[-1].kind == "vmem"]
                e(*interleave(mf[2:], fill))
            if lag == 1:
                self.eg(stores(6))
            else:
                self.eg([g for g in stores(6) if g[-1].kind != "vmem"])
                for n in range(max(0, 7 - lag), 7):
                    self.eg([g for g in stores(n) if g[-1].kind == "vmem"])

        e(f"s_mov_b32 s{sT2}, 0x{OOB:x}")
        self.eg(reads(0))
        la, lb = (int(x) for x in self.c["slag"].split(","))
        if la == lb:
            blocks(la)
        else:
            e(f"s_cmp_eq_u32 s{sBR}, 0", "s_cbranch_scc1 L_tail_a")
            blocks(lb)
            e("s_branch L_tail_done", "L_tail_a:")
            blocks(la)
            e("L_tail_done:")
        self.stamp()

    def fused_reduce(self):
        e = self.e
        c = self.c
        e("; publish, wait for the other heads of this batch, reduce one slab of the output")
        e(f"s_lshl3_add_u32 s3, s{sBR}, s{sB}",
          f"s_mul_i32 s4, s{sW}, 14" if c["wflag"] or c["keep"] else f"s_lshl_b32 s4, s{sH}, 2",
          f"s_add_u32 s4, s4, s{sH if c['wflag'] or c['keep'] else sW}")
        if c["omap"]:
            e(f"s_lshr_b32 s4, s{sH}, 1", f"s_lshl2_add_u32 s4, s4, s{sW}", f"s_lshl1_add_u32 s4, s4, s{sHP}")
        e(
          f"s_mul_i32 s5, s3, {16 * 57344}",
          f"s_add_u32 s{S_K}, s{sWSP}, s5", f"s_addc_u32 s{S_K + 1}, s{sWSP + 1}, 0",
          f"s_mov_b32 s{S_K + 2}, {16 * 57344}",
          f"s_mov_b32 s{S_V}, s{sOUT}", f"s_mov_b32 s{S_V + 1}, s{sOUT + 1}", f"s_mov_b32 s{S_V + 2}, 917504",
          "s_lshl_b32 s5, s4, 10", "v_lshl_add_u32 v1, v0, 4, s5",
          "s_and_b32 s5, s4, 1",
          "s_lshr_b32 s6, s4, 1",
          f"s_lshl1_add_u32 s5, s{sB}, s5",
          f"s_mul_i32 s{sT0}, s5, {32 * 1792}",
          f"s_mul_i32 s7, s{sBR}, 896", f"s_add_u32 s{sT0}, s{sT0}, s7",
          "s_lshl_b32 s6, s6, 5", f"s_add_u32 s{sT0}, s{sT0}, s6",
          "v_and_b32 v3, 15, v0", "v_mul_u32_u24 v2, 1792, v3",
          "v_lshrrev_b32 v4, 4, v0", "v_lshl_add_u32 v2, v4, 3, v2",
          f"v_add_u32 v2, s{sT0}, v2",
          f"s_and_b32 s5, s{sH}, {c['frep'] - 1}", "s_lshl_b32 s5, s5, 8",
          "v_lshl_add_u32 v3, v3, 2, s5",
          f"s_lshl_b32 s5, s{sH}, 2", f"s_cmp_eq_u32 s{sW}, {'s%d' % sW if c['wflag'] else 0}", f"s_cselect_b32 s5, s5, 0x{OOB:x}",
          "v_lshl_add_u32 v4, v0, 8, s5",
          "v_mov_b32 v5, 1",
          f"v_readfirstlane_b32 s6, v{vRdy}",
          f"s_mov_b32 s7, {SPIN_MAX}",
          "s_cmp_eq_u32 s6, 1", "s_cbranch_scc1 L_ready",
          "L_rdy_spin:",
          f"buffer_load_dword v{vRdy}, off, {srd(S_DBG)}, 0 sc1",
          "s_waitcnt vmcnt(0)",
          f"v_readfirstlane_b32 s6, v{vRdy}",
          "s_sub_u32 s7, s7, 1", "s_cmp_eq_u32 s7, 0", "s_cbranch_scc1 L_ready",
          "s_cmp_eq_u32 s6, 1", "s_cbranch_scc0 L_rdy_spin",
          "L_ready:")
        if c["keep2"]:
            e(f"s_mov_b32 s5, {EX + 16384}", "v_lshl_add_u32 v7, v0, 4, s5")
            for k in range(4):
                e(f"s_add_u32 s6, s{sWQP + 1}, {k}", "s_cmp_lt_u32 s6, 7", f"s_cbranch_scc0 L_own{k}",
                  f"s_lshl1_add_u32 s6, s6, s{sHP}", "s_lshl_b32 s6, s6, 2",
                  "s_set_gpr_idx_on s6, gpr_idx(SRC0)", "s_nop 1")
                for x in range(4):
                    e(f"v_mov_b32 v{8 + 4 * k + x}, v{vP + x}")
                e("s_set_gpr_idx_off", "s_nop 1",
                  f"ds_write_b128 v7, {rng('v', 8 + 4 * k, 4)} offset:{k * 1024}",
                  f"L_own{k}:")
            e(f"v_add_u32 v7, s{sM1024}, v7", "s_waitcnt lgkmcnt(0)")
        if c["keep"]:
            e(f"s_min_u32 s6, s{sH}, 13", "s_lshl_b32 s6, s6, 2", "s_set_gpr_idx_on s6, gpr_idx(SRC0)", "s_nop 1")
            for x in range(4):
                e(f"v_mov_b32 v{8 + x}, v{vP + x}")
            e("s_set_gpr_idx_off", "s_nop 1")
        e("s_waitcnt vmcnt(0)")
        self.stamp()
        if not c["wflag"]:
            e("s_barrier")
        e(f"buffer_store_dword v5, v4, {srd(S_FL)}, 0 offen sc1",
          f"s_cmp_ge_u32 s{sH}, 14", "s_cbranch_scc1 L_fin",
          f"s_mov_b32 s7, {SPIN_MAX}",
          "s_mov_b32 s4, 0x00003f80", "s_mov_b32 s5, 0x3f800000", f"s_mov_b32 s6, {16 * 1792}")
        acc = 128
        if c["eg"]:
            self.early_gather(acc)
        else:
            n = c["ppoll"]
            if c["keep2"]:
                e("ds_read_b128 v[8:11], v7")
            if c["onepoll"]:
                e(f"s_cmp_lg_u32 s{sW}, 0", "s_cbranch_scc1 L_go")
            for k in range(n):
                e(f"buffer_load_dword v{24 + k}, v3, {srd(S_FL)}, 0 offen sc1", f"s_sleep {c['sleep']}")
            e("; bounded poll of the group's flags", "L_poll:")
            for k in range(n + 1):
                e(f"buffer_load_dword v{24 + (k + n) % (n + 1)}, v3, {srd(S_FL)}, 0 offen sc1",
                  f"s_waitcnt vmcnt({n})",
                  f"v_cmp_ne_u32 vcc, 1, v{24 + k}",
                  "s_nop 1",
                  "s_cbranch_vccz L_go")
                if c["sleep"]:
                    e(f"s_sleep {c['sleep']}")
            e("s_sub_u32 s7, s7, 1", "s_cmp_eq_u32 s7, 0", "s_cbranch_scc0 L_poll",
              "L_go:")
            if c["onepoll"]:
                e("s_barrier")
            if c["keep"] or c["keep2"]:
                nl = 15
                for k in range(nl):
                    e(f"s_cmp_le_u32 s{sH}, {k}", f"s_cselect_b32 s{sSOFF}, {k + 1}, {k}", f"s_mul_i32 s{sSOFF}, s{sSOFF}, 57344",
                      f"buffer_load_dwordx4 {rng('v', 64 + 4 * k, 4)}, v1, {srd(S_K)}, s{sSOFF} offen {c['aux_rd']}")
                e("s_waitcnt lgkmcnt(0)")
                for x in range(4):
                    for hi in range(2):
                        e(f"v_dot2_f32_bf16 v{acc + 2 * x + hi}, v{8 + x}, s{4 + hi}, 0")
            else:
                nl = 16
                e(f"s_mov_b32 s{sSOFF}, 0")
                for h in range(16):
                    e(f"buffer_load_dwordx4 {rng('v', 64 + 4 * h, 4)}, v1, {srd(S_K)}, s{sSOFF} offen {c['aux_rd']}")
                    if h < 15:
                        e(f"s_add_u32 s{sSOFF}, s{sSOFF}, 57344")
            for h in range(nl):
                e(f"s_waitcnt vmcnt({nl - 1 - h})")
                for x in range(4):
                    for hi in range(2):
                        a = acc + 2 * x + hi
                        e(f"v_dot2_f32_bf16 v{a}, v{64 + 4 * h + x}, s{4 + hi}, {'0' if h == 0 and nl == 16 else 'v%d' % a}")
        for k in range(4):
            e(f"v_cvt_pk_bf16_f32 v{44 + k}, v{acc + 2 * k}, v{acc + 1 + 2 * k}")
        e(f"buffer_store_dwordx2 v[44:45], v2, {srd(S_V)}, 0 offen {c['aux_out']}",
          f"buffer_store_dwordx2 v[46:47], v2, {srd(S_V)}, s6 offen {c['aux_out']}")
        e("L_fin:")

    def early_gather(self, acc):
        e = self.e
        c = self.c
        n = c["eg"]
        ng = 16 // n
        full = (1 << ng) - 1
        sDone, sPend, sPrev, sNew = sSL, sSL + 1, sSL + 2, sSL + 3
        e(f"s_mov_b32 s{sDone}, 0", f"s_mov_b32 s{sPend}, 0",
          "L_poll:",
          f"s_mov_b32 s{sPrev}, s{sPend}", f"s_mov_b32 s{sPend}, 0",
          f"s_cmp_eq_u32 s{sDone}, {full}", "s_cbranch_scc1 L_last",
          f"buffer_load_dword v6, v3, {srd(S_FL)}, 0 offen sc1",
          "s_sub_u32 s7, s7, 1",
          "s_waitcnt vmcnt(0)",
          "v_cmp_eq_u32 vcc, 1, v6",
          "s_cmp_eq_u32 s7, 0",
          f"s_cselect_b32 s{sNew}, -1, vcc_lo")
        for k in range(ng):
            m = ((1 << n) - 1) << (n * k)
            e(f"s_bitcmp1_b32 s{sDone}, {k}", f"s_cbranch_scc1 L_noload{k}",
              f"s_and_b32 s3, s{sNew}, {m}", f"s_cmp_eq_u32 s3, {m}", f"s_cbranch_scc0 L_noload{k}",
              f"s_bitset1_b32 s{sPend}, {k}", f"s_bitset1_b32 s{sDone}, {k}")
            for h in range(n * k, n * k + n):
                e(f"s_mov_b32 s{sSOFF}, {h * 57344}",
                  f"buffer_load_dwordx4 {rng('v', 64 + 4 * h, 4)}, v1, {srd(S_K)}, s{sSOFF} offen {c['aux_rd']}")
            e(f"L_noload{k}:")
        e("s_branch L_accum", "L_last:", "s_waitcnt vmcnt(0)", "L_accum:")
        for k in range(ng):
            e(f"s_bitcmp1_b32 s{sPrev}, {k}", f"s_cbranch_scc0 L_noacc{k}")
            for h in range(n * k, n * k + n):
                for x in range(4):
                    for hi in range(2):
                        a = acc + 8 * k + 2 * x + hi
                        e(f"v_dot2_f32_bf16 v{a}, v{64 + 4 * h + x}, s{4 + hi}, {'0' if h == n * k else 'v%d' % a}")
            e(f"L_noacc{k}:")
        e(f"s_cmp_lg_u32 s{sPend}, 0", "s_cbranch_scc1 L_poll",
          f"s_cmp_eq_u32 s{sDone}, {full}", "s_cbranch_scc1 L_sum")
        if c["sleep"]:
            e(f"s_sleep {c['sleep']}")
        e("s_branch L_poll", "L_sum:", "s_nop 2")
        step = 1
        while step < ng:
            for k in range(0, ng, 2 * step):
                for x in range(0, 8, 2):
                    e(f"v_pk_add_f32 {pair(acc + 8 * k + x)}, {pair(acc + 8 * k + x)}, {pair(acc + 8 * (k + step) + x)}")
            step *= 2

    def finish(self):
        e = self.e
        if self.c["stamps"]:
            e("s_waitcnt vmcnt(0)")
            while self.nstamp < 10:
                self.stamp()
            e("s_waitcnt lgkmcnt(0)",
              f"s_lshl2_add_u32 s6, s2, s{sW}", "s_lshl_b32 s6, s6, 7",
              "s_add_u32 s6, s6, 0x1000000",
              f"s_add_u32 s{S_WS}, s{sWSP}, s6", f"s_addc_u32 s{S_WS + 1}, s{sWSP + 1}, 0",
              f"s_mov_b32 s{S_WS + 2}, 128",
              "v_lshlrev_b32 v4, 2, v0",
              "v_mov_b32 v0, 0")
            if self.c["stamps"] == 2:
                e(f"v_writelane_b32 v{vT3}, s98, 60", "s_memtime s[96:97]", "s_waitcnt lgkmcnt(0)",
                  "v_mov_b32 v2, s96", "v_mov_b32 v3, s100",
                  f"buffer_store_dwordx2 v[2:3], v0, {srd(S_WS)}, 0 offen offset:120",
                  f"s_lshl2_add_u32 s7, s2, s{sW}", "s_lshl_b32 s7, s7, 9",
                  "s_add_u32 s7, s7, 0x1100000",
                  f"s_add_u32 s{S_X}, s{sWSP}, s7", f"s_addc_u32 s{S_X + 1}, s{sWSP + 1}, 0", f"s_mov_b32 s{S_X + 2}, 512",
                  f"buffer_store_dword v{vT2}, v4, {srd(S_X)}, 0 offen",
                  f"buffer_store_dword v{vT3}, v4, {srd(S_X)}, 0 offen offset:256")
            for k in range(10):
                r = sSTAMP + 2 * k
                e(f"v_mov_b32 v2, s{r}", f"v_mov_b32 v3, s{r + 1}",
                  f"buffer_store_dwordx2 v[2:3], v0, {srd(S_WS)}, 0 offen offset:{8 * k}")

    def main(self):
        self.prologue()
        self.body()
        self.e("L_main_end:", "s_endpgm")


HEADER = """; Fused Q-projection / attention / output-projection for both branches, one launch.
; Kernarg (8-byte pointers): A_x A_k A_v A_wq A_wo B_x B_k B_v B_wq B_wo out debug ws.
; One workgroup (4 waves) per (branch, batch, head); ids 8 apart share weights / grouped K,V through L2.
; Each workgroup writes its bf16 partial of out to ws with write-through stores and sets a flag;
; 14 of the 16 workgroups of a (branch, batch) then sum the 16 partials of their slab in a fixed order
; The flag line is cleared by the head-0 workgroup, which announces that through debug[group].
; @launch grid=(256,1,1) block=(256,1,1) lds=163840
.amdgcn_target "amdgcn-amd-amdhsa--gfx950"
.text
"""

KD = """.amdhsa_kernel {label}
  .amdhsa_next_free_vgpr 512
  .amdhsa_next_free_sgpr 102
  .amdhsa_accum_offset 256
  .amdhsa_group_segment_fixed_size 0
  .amdhsa_kernarg_size 104
  .amdhsa_user_sgpr_count 2
  .amdhsa_user_sgpr_kernarg_segment_ptr 1
  .amdhsa_system_sgpr_workgroup_id_x 1
  .amdhsa_float_denorm_mode_32 3
.end_amdhsa_kernel
"""


def ablate(ins, what):
    out = []
    step = 0
    for x in ins:
        if x.text.startswith("; step "):
            step = int(x.text.split()[2][:-1])
        if x.text.startswith("; publish"):
            step = 99
        sm = 34 <= step <= 39
        if "v" in what and sm and x.kind == "valu" and not x.text.startswith("v_add_u32"):
            continue
        if "w" in what and sm and x.text.startswith("ds_write_b128"):
            continue
        if "r" in what and 37 <= step <= 40 and x.text.startswith("ds_read_b128 a"):
            continue
        if "m" in what and x.kind == "mfma":
            continue
        if "p" in what and step < 99 and (x.text.startswith("ds_write_b64") or x.text.startswith("v_cvt_pk_bf16_f32 v4")):
            continue
        out.append(x)
    return out


def build(cfg):
    g = Gen(cfg)
    g.main()
    if cfg["abl"]:
        g.o = ablate(g.o, cfg["abl"])
    label = NAME + "_kernel"
    s = HEADER + f".globl {label}\n.p2align 8\n.type {label},@function\n{label}:\n"
    s += render(pad_hazards(g.o))
    s += '.section .rodata,"a"\n.p2align 6\n' + KD.format(label=label)
    return s


if __name__ == "__main__":
    ap = argparse.ArgumentParser()
    ap.add_argument("-o", default="cdna_kernels/" + NAME + ".s")
    ap.add_argument("opts", nargs="*")
    a = ap.parse_args()
    cfg = dict(DEFAULTS)
    for o in a.opts:
        k, v = o.split("=", 1)
        assert k in cfg, k
        cfg[k] = type(cfg[k])(v.replace("+", " "))
    open(a.o, "w").write(build(cfg))
    print("wrote", a.o, " ".join(a.opts), file=sys.stderr)
```

```python
import argparse
import json
import math
import struct
import sys

from asmdsl import I, interleave, pad_hazards, render, rng

NAME = "concat_heads__gqa_block_cached__mha_block_cached__near_ridge"

DEFAULTS = dict(
    ks="5l,5l,5l,4m",
    vs="5l,5l,5l,4l",
    qs="4m,4l,4s,4f",
    os="4m,4l,4s,4f",
    over="8:5m/9:6b/10:6b/11:6b/12:3l/35:5b/36:3l/37:3m/38:3l/39:4b/40:4m/41:4l/42:4s/43:5l/44:6b/45:6s/46:6l/47:6l/48:3l/49:3f",
    pre=7,
    rpg=2,
    dgap=3,
    kbar=0,
    aux_x="", aux_w="", aux_kv="nt", aux_st="sc1", aux_rd="sc1", aux_out="",
    rot=1, wsw=1, xrot=0, touch3=0,
    wflag=0,
    keep=0,
    chain=1,
    ilv="",
    early="",
    xsplit=0,
    ochain=1,
    tlb="",
    tlbat="11,43",
    help=0,
    helpat=19,
    l2pf="",
    pfpos="b",
    frep=1,
    keep2=1,
    smx=1,
    klate="32,33,34,35",
    kcut=6,
    nearly=3,
    slag="1,1",
    shift=0,
    al=0,
    coop="",
    coopat=33,
    rot2=-1,
    athr="",
    wgmap=0,
    numa=0,
    ppub=0,
    nolag=0,
    omap=1,
    onepoll=1,
    ppoll=0,
    sleep=0,
    eg=0,
    cpf=2,
    cntst=0,
    rdy="11,27,50",
    stamps=0,
    abl="",
)

EX = 131072
LSUM = 28672
OOB = 0x80000000
FLAGS = 0xE00000
SPIN_MAX = 1 << 20

S_X, S_K, S_V, S_WQ, S_WO, S_WS, S_FL = 8, 12, 16, 20, 24, 28, 32
S_DBG = S_X
sW, sBR, sB, sH, sWSW, sT0, sT1, sT2, sSOFF, sM4096, sM1024, sHP = range(58, 70)
sC = 70
sWQP, sWOP, sKP = 74, 76, 78
sSL, sWOJ = 80, 84
sKVOFF = 88
sOUT, sDBGP, sWSP = 92, 94, 56
sSTAMP = 36

vWqD, vKD, vVD, vWoD = 1, 2, 4, 5
vWqR, vKR, vVR, vWoR = 12, 13, 15, 19
vExOwn, vQW, vOW, vExQ, vExOb, vSt, vRdy = 23, 27, 28, 29, 30, 31, 36
vRL, vLead, vT2, vT3 = 32, 37, 38, 39
vPF = 39
vCV, vG1, vP, vS = 40, 48, 64, 128
vQ = 64
vMC, vM, vL, vSUM, vT = 112, 124, 40, 48, 56
vRed, vSq = 1, 2
aX, aPP, aB2, aF = 0, 0, 192, 224


def srd(n):
    return f"s[{n}:{n + 3}]"


def pair(n):
    return f"v[{n}:{n + 1}]"


def bcast(reg, nsrc):
    k = reg & 1
    lo = ",".join(["0"] * (nsrc - 1) + [str(k)])
    hi = ",".join(["1"] * (nsrc - 1) + [str(k)])
    return pair(reg & ~1), f"op_sel:[{lo}] op_sel_hi:[{hi}]"


def tile_list():
    t = [("x", 0, i) for i in range(4)]
    for j in range(4):
        t += [("wq", j, i) for i in range(4)] + [("k", j, i) for i in range(4)]
    for j in range(4):
        t += [("v", j, i) for i in range(4)] + [("wo", j, i) for i in range(4)]
    return t


TILES = tile_list()


def default_spec(cfg, kind, i):
    return cfg[{"k": "ks", "v": "vs", "wq": "qs", "wo": "os"}[kind]].split(",")[i]


class Gen:
    def __init__(self, cfg):
        self.c = cfg
        self.o = []
        self.issued = 0
        self.nstamp = 0
        self.vm = []
        self.sched = self.make_sched(cfg)

    def e(self, *lines):
        for ln in lines:
            ins = I(ln) if isinstance(ln, str) else ln
            if ins.kind == "vmem" and (ins.load or self.c["cntst"]):
                self.vm.append(getattr(ins, "tag", None))
            self.o.append(ins)

    def eg(self, groups):
        for g in groups:
            self.e(*g)

    def stamp(self):
        if self.c["stamps"] and self.nstamp < 10:
            r = sSTAMP + 2 * self.nstamp
            self.e(f"s_memrealtime s[{r}:{r + 1}]")
            self.nstamp += 1

    def has_barrier(self, t):
        kind, _, i = TILES[t]
        if kind == "k":
            return i == 1 or self.c["kbar"]
        if kind == "wo":
            return i == 1 or t == 40 if self.c["ochain"] else i != 3
        return True

    def cover(self, t):
        kind, _, i = TILES[t]
        if kind == "wo" and self.c["ochain"]:
            return t - 1 if i == 0 else t - i + 3
        return t + 1 if kind == "wo" and i % 2 == 0 else t

    def slot_free(self, u, t):
        if u < 8:
            return True
        prev = u - 8
        kind, _, i = TILES[prev]
        if kind == "x":
            return i < 2 or t >= 4
        last_reader = prev + 1 if kind == "wo" and i % 2 == 0 else prev
        if kind == "wo" and self.c["ochain"]:
            last_reader = prev - i + 3
        if kind == "k" and TILES[u][0] == "k":
            return last_reader < t
        return any(self.has_barrier(b) for b in range(last_reader + 1, t + 1))

    def make_sched(self, cfg):
        order = "fslmb"
        over = dict(p.split(":") for p in cfg["over"].split("/") if p)
        sched = {}
        last = (3, 0)
        for u in range(cfg["pre"] + 1, len(TILES)):
            kind, _, i = TILES[u]
            spec = over.get(str(u)) or default_spec(cfg, kind, i)
            at = (min(63, u - int(spec[:-1])), order.index(spec[-1]))
            while not self.slot_free(u, at[0]):
                at = (at[0] + 1, 0)
            at = max(at, last)
            assert at[0] < u - 1
            assert not (cfg["ochain"] and kind == "wo") or at[0] <= u - i
            last = at
            sched.setdefault(at[0], {}).setdefault(order[at[1]], []).append(u)
        return sched

    def dma_at(self, t, pos):
        g = []
        for u in self.sched.get(t, {}).get(pos, []):
            assert u == self.issued
            g += self.dma_groups(u)
            self.issued += 1
        for item in self.c["l2pf"].split("/"):
            if item and int(item.split(":")[0]) == t and pos == self.c["pfpos"]:
                kind, j, i = TILES[int(item.split(":")[1])]
                g.append([I(f"s_add_u32 s6, s{sSL + j}, {i * 65536}"),
                          I(f"buffer_load_dword v{vT2}, v{vPF}, {srd(S_K if kind == 'k' else S_V)}, s6 offen")])
        return g

    def younger(self, tag):
        last = max(k for k, x in enumerate(self.vm) if x == tag)
        return len(self.vm) - 1 - last

    def sync(self, t, slot=None, upto=None, barrier=None):
        slot = t - 4 if slot is None else slot
        upto = self.cover(t) if upto is None else upto
        barrier = self.has_barrier(t) if barrier is None else barrier
        fine = self.c["stamps"] == 2 and slot >= 0
        if fine:
            self.e("s_memtime s[96:97]")
        if self.c["al"]:
            self.e(f".p2align {self.c['al']}")
            if not barrier:
                self.e("s_nop 0")
        self.e(f"s_waitcnt vmcnt({self.younger(upto)}) lgkmcnt(0)")
        if fine:
            self.e(f"v_writelane_b32 v{vT2}, s96, {slot}")
            if slot > 0:
                self.e(f"v_writelane_b32 v{vT3}, s98, {slot - 1}")
        if barrier:
            self.e("s_barrier")
        if fine:
            self.e("s_memtime s[98:99]")

    def make_srd(self, dst, pa, pb, off, nrec):
        self.e(f"s_cmp_eq_u32 s{sBR}, 0",
               f"s_cselect_b32 s{dst}, s{pa}, s{pb}",
               f"s_cselect_b32 s{dst + 1}, s{pa + 1}, s{pb + 1}",
               f"s_add_u32 s{dst}, s{dst}, s{off}",
               f"s_addc_u32 s{dst + 1}, s{dst + 1}, 0",
               f"s_mov_b32 s{dst + 2}, {nrec}",
               f"s_mov_b32 s{dst + 3}, 0x00020000")

    def x_dma(self, n):
        i, u = divmod(n, 4)
        base = (EX if i < 2 else 0) + i * 16384
        if self.c["xrot"]:
            if u == 0:
                g = [f"s_add_u32 s6, s7, {i}", "s_and_b32 s6, s6, 3",
                     f"s_mul_i32 s{sSOFF}, s6, {16 * 896}",
                     "s_cmp_lt_u32 s6, 2", f"s_cselect_b32 s5, {EX}, 0",
                     "s_lshl_b32 s6, s6, 14", f"s_add_u32 s5, s5, s{sT2}", "s_add_u32 m0, s5, s6"]
            else:
                g = ["s_add_u32 m0, m0, 32"]
        else:
            g = [f"s_add_u32 m0, s{sT2}, {base + 32 * u}"]
            if u == 0:
                g.append(f"s_mov_b32 s{sSOFF}, {i * 16 * 896}")
        ld = I(f"buffer_load_dwordx4 v41, {srd(S_X)}, s{sSOFF} offen offset:{896 * u} {self.c['aux_x']} lds")
        ld.tag = i
        return g + [ld]

    def prologue(self):
        c = self.c
        e = self.e
        e("s_cmp_ge_u32 s2, 256", "s_cbranch_scc1 L_main_end")
        e("s_load_dwordx16 s[36:51], s[0:1], 0",
          "s_load_dwordx4 s[52:55], s[0:1], 64",
          f"s_load_dwordx4 s[{sOUT}:{sOUT + 3}], s[0:1], 80",
          f"s_load_dwordx2 s[{sWSP}:{sWSP + 1}], s[0:1], 96")
        if c["stamps"]:
            e("s_memrealtime s[98:99]", "s_memtime s[100:101]")
        e("v_lshrrev_b32 v40, 6, v0", "v_and_b32 v0, 63, v0", f"v_readfirstlane_b32 s{sW}, v40")
        if c["wgmap"] == 1:
            e(f"s_and_b32 s{sBR}, s2, 1",
              "s_and_b32 s3, s2, 6", "s_bfe_u32 s4, s2, 0x10004", "s_or_b32 s3, s3, s4",
              f"s_lshr_b32 s{sB}, s2, 5")
        elif c["wgmap"] == 2:
            e("s_and_b32 s3, s2, 7",
              f"s_bfe_u32 s{sBR}, s2, 0x10004",
              f"s_lshr_b32 s{sB}, s2, 5")
        elif c["wgmap"] == 3:
            e("s_and_b32 s3, s2, 7",
              f"s_lshr_b32 s{sBR}, s2, 7", f"s_xor_b32 s{sBR}, s{sBR}, 1",
              f"s_bfe_u32 s{sB}, s2, 0x30004")
        else:
            e("s_and_b32 s3, s2, 7",
              f"s_lshr_b32 s{sBR}, s2, 7",
              f"s_bfe_u32 s{sB}, s2, 0x30004")
        e(f"s_bfe_u32 s{sHP}, s2, 0x10003",
          f"s_mul_i32 s{sT0}, s{sW}, {4 * 896}",
          f"v_lshl_add_u32 v41, v0, 4, s{sT0}",
          f"s_mul_i32 s{sT1}, s{sB}, 57344",
          f"s_mul_i32 s{sT2}, s{sW}, {4 * 928}",
          f"s_lshl1_add_u32 s{sH}, s3, s{sHP}",
          f"s_lshl_b32 s{sT0}, s{sH}, 9")
        if c["cpf"]:
            n = c["cpf"]
            e("; read two lines of this kernel's code so that later instruction fetches hit L2")
            e("s_getpc_b64 s[4:5]", "L_pc_base:",
              "s_lshr_b32 s6, s2, 3", f"s_lshl2_add_u32 s6, s6, s{sW}",
              f"s_mul_i32 s6, s6, {n}",
              "v_add_u32 v42, s6, v0",
              "v_lshlrev_b32 v42, 7, v42",
              "v_min_u32 v42, L_main_end-L_pc_base, v42",
              "v_mov_b32 v43, s5",
              "v_add_co_u32 v42, vcc, s4, v42",
              "v_addc_co_u32 v43, vcc, 0, v43, vcc",
              f"s_mov_b64 exec, {(1 << n) - 1}",
              f"global_load_dword v{vRdy}, v[42:43], off",
              "s_mov_b64 exec, -1")
        if c["xrot"] == 1:
            e("s_mov_b32 s7, s3")
        if c["xrot"] == 2:
            e(f"s_lshl1_add_u32 s7, s{sHP}, s3")
        if c["xrot"] == 3:
            e("s_lshl_b32 s7, s3, 1")
        if c["touch3"]:
            e(f"s_mul_i32 s6, s{sB}, 56", f"s_mul_i32 s5, s{sW}, 14", "s_add_u32 s6, s6, s5",
              "s_lshl_b32 s6, s6, 13", "s_add_u32 s6, s6, 384",
              f"s_cmp_eq_u32 s{sHP}, 0", f"s_cselect_b32 s6, s6, 0x{OOB:x}",
              f"v_lshl_add_u32 v{vLead}, v0, 13, s6")
        e("s_waitcnt lgkmcnt(0)")
        self.make_srd(S_X, 36, 46, sT1, 57344)
        e("s_mov_b32 exec_hi, 0x00ffffff")
        ilv = [int(x) for x in c["ilv"].split(",")] if c["ilv"] else None
        nfirst = 4 * min(x for x in ilv + [4] if x <= 4) if ilv else 11
        for n in range(nfirst):
            e(*self.x_dma(n))
        e("s_mov_b32 exec_hi, -1")
        self.make_srd(S_WQ, 42, 52, sT0, 0)
        e(f"s_sub_u32 s{S_WQ + 2}, 3670016, s{sT0}")
        if "q" in c["coop"]:
            e(f"s_mul_i32 s6, s{sB}, 56", f"s_mul_i32 s5, s{sW}, 14", "s_add_u32 s6, s6, s5", "s_lshl_b32 s6, s6, 13",
              "v_lshrrev_b32 v42, 2, v0", "v_and_b32 v43, 3, v0", "v_lshlrev_b32 v43, 7, v43",
              "v_lshl_add_u32 v42, v42, 13, v43",
              "s_mov_b32 exec_hi, 0x00ffffff",
              f"buffer_load_dword v{vT2}, v42, {srd(S_WQ)}, s6 offen",
              "s_mov_b32 exec_hi, -1")
        if c["touch3"]:
            e("s_mov_b64 exec, 0x3fff",
              f"buffer_load_dword v{vLead}, v{vLead}, {srd(S_WQ)}, 0 offen",
              "s_mov_b64 exec, -1")
        e(f"s_lshl_b32 s{sM4096}, s{sW}, 12",
          f"s_lshl_b32 s{sM1024}, s{sW}, 10")
        e(f"s_lshr_b32 s{sWSW}, s{sB}, 2" if c["wsw"] else f"s_mov_b32 s{sWSW}, 0")
        e(f"s_mul_i32 s{sWQP}, s{sWSW}, {224 * 8192}",
          f"s_sub_u32 s{sWQP + 1}, {224 * 8192}, s{sWQP}")
        e(*self.slice_setup(0))
        e("v_lshrrev_b32 v42, 3, v0",
          "v_and_b32 v43, 7, v0",
          "v_and_b32 v44, 2, v42",
          f"s_and_b32 s6, s{sW}, 1", "s_lshl_b32 s6, s6, 2",
          "v_xor_b32 v44, v44, v43",
          "v_xor_b32 v44, s6, v44",
          f"s_lshl_b32 s6, s{sW}, 16",
          "v_lshl_add_u32 v45, v42, 13, s6",
          f"v_lshl_add_u32 v{vWqD}, v44, 4, v45")
        if ilv:
            for u in ilv[:2]:
                self.start_tile(u)
        e(f"s_lshl4_add_u32 s6, s{sB}, s{sH}", f"s_lshl3_add_u32 s5, s{sB}, s3",
          f"s_cmp_eq_u32 s{sBR}, 0", "s_cselect_b32 s6, s5, s6",
          f"s_lshl_b32 s{sKVOFF}, s6, 18")
        self.make_srd(S_K, 38, 48, sKVOFF, 262144)
        e("v_and_b32 v45, 1, v42",
          "v_lshrrev_b32 v46, 1, v42")
        if c["numa"]:
            src = {1: "s3", 2: f"s{sB}", 3: "0"}[c["numa"]]
            e("v_and_b32 v47, 1, v46", "v_lshl_add_u32 v45, v47, 3, v45",
              "v_lshrrev_b32 v47, 2, v42", "v_lshl_add_u32 v45, v47, 8, v45",
              f"s_and_b32 s6, {src}, 1", f"s_lshl_b32 s{sKP}, s6, 13", f"s_xor_b32 s{sKP + 1}, s{sKP}, 0x2000")
        else:
            e("v_lshl_add_u32 v45, v46, 3, v45")
        e(f"s_lshl_b32 s6, s{sW}, 14",
          "v_lshl_add_u32 v45, v45, 9, s6",
          "v_and_b32 v44, 6, v42",
          "v_xor_b32 v44, v44, v43",
          f"v_lshl_add_u32 v{vVD}, v44, 4, v45",
          "v_xor_b32 v46, v46, v43",
          f"v_lshl_add_u32 v{vKD}, v46, 4, v45",
          f"v_xor_b32 v{vKD + 1}, 64, v{vKD}")
        if c["l2pf"]:
            assert c["stamps"] != 2
            e(f"s_lshl_b32 s6, s{sW}, 15", f"v_lshl_add_u32 v{vPF}, v0, 9, s6",
              "v_lshrrev_b32 v47, 5, v0", f"v_xor_b32 v47, s{sHP}, v47",
              f"s_xor_b32 s6, s{sBR}, 1", "v_and_b32 v47, s6, v47",
              f"v_lshl_or_b32 v{vPF}, v47, 31, v{vPF}")
        e("v_lshrrev_b32 v51, 4, v0",
          "v_and_b32 v57, 15, v0",
          "v_mul_u32_u24 v57, 928, v57",
          "v_lshl_add_u32 v57, v51, 4, v57",
          f"s_mul_i32 s6, s{sWSW}, 448",
          "v_add_u32 v110, s6, v57",
          "s_sub_u32 s6, 448, s6",
          "v_add_u32 v111, s6, v57",
          f"v_add_u32 v108, {EX}, v110",
          f"v_add_u32 v109, {EX}, v111",
          "v_bfe_u32 v53, v0, 2, 2",
          "v_bfe_u32 v54, v0, 3, 2",
          f"v_xor_b32 v54, s{sW}, v54",
          "v_and_b32 v55, 3, v0",
          "v_lshl_add_u32 v54, v54, 2, v55",
          "v_lshl_add_u32 v56, v51, 3, v53",
          "v_lshl_add_u32 v56, v56, 4, v54",
          "v_lshlrev_b32 v56, 3, v56",
          f"v_add_u32 v{vWqR}, 0x10000, v56")
        if ilv:
            for u in ilv[2:]:
                self.start_tile(u)
            self.issued = max(ilv) + 1
        else:
            e("s_mov_b32 exec_hi, 0x00ffffff")
            for n in range(11, 16):
                e(*self.x_dma(n))
            e("s_mov_b32 exec_hi, -1")
            self.issued = 4
        blocks = [int(x) for x in c["early"].split(",") if x]
        setup = []
        for t in blocks:
            saved, self.o = self.o, []
            self.deferred(t, True)
            setup += self.o
            self.o = saved
        groups = []
        while self.issued <= c["pre"]:
            groups += self.dma_groups(self.issued)
            self.issued += 1
        cuts = [k for k in range(len(setup) + 1)
                if k == len(setup) or not any(setup[k].text.startswith(p) for p in ("s_cselect", "s_addc"))]
        done = 0
        for n, g in enumerate(groups):
            want = (n + 1) * len(setup) // len(groups)
            upto = max(k for k in cuts if k <= max(want, done))
            e(*setup[done:upto])
            done = max(done, upto)
            e(*g)
        e(*setup[done:])

    def start_tile(self, u):
        if u < 4:
            self.e("s_mov_b32 exec_hi, 0x00ffffff")
            for n in range(4 * u, 4 * u + 4):
                self.e(*self.x_dma(n))
            self.e("s_mov_b32 exec_hi, -1")
        else:
            if u in (5, 7):
                self.e(f"s_add_u32 s{sSOFF}, s{sWQP + (u - 4) // 2}, s{sSL}", f"s_add_u32 s{sSOFF}, s{sSOFF}, 0xc0000")
            self.eg(self.dma_groups(u))

    def slice_setup(self, j):
        if self.c["rot"]:
            ops = [f"s_add_u32 s6, s{sB}, {j}", "s_and_b32 s6, s6, 3"]
        else:
            ops = [f"s_mov_b32 s6, {j}"]
        return ops + [f"s_lshl_b32 s{sSL + j}, s6, 7", f"s_mul_i32 s{sWOJ + j}, s6, {64 * 896}"]

    def deferred(self, t, moved=False):
        c = self.c
        e = self.e
        if t == int(c["rdy"].split(",")[0]) and not moved:
            if c["frep"] == 1:
                e(f"v_mov_b32 v{vRdy}, 0", f"buffer_store_dword v{vRdy}, v{vLead}, {srd(S_FL)}, 0 offen sc1")
            else:
                e("v_mov_b32 v100, 0", "v_mov_b32 v101, 0", "v_mov_b32 v102, 0", "v_mov_b32 v103, 0",
                  "v_lshrrev_b32 v104, 2, v0", "v_and_b32 v105, 3, v0", "v_lshlrev_b32 v105, 4, v105",
                  "v_lshl_add_u32 v104, v104, 8, v105",
                  f"v_and_b32 v105, 0x{OOB:x}, v{vLead}", "v_or_b32 v104, v104, v105",
                  f"buffer_store_dwordx4 v[100:103], v104, {srd(S_FL)}, 0 offen sc1")
        if t == 8 and c["stamps"]:
            e(f"s_mov_b32 s{sSTAMP}, s90", f"s_mov_b32 s{sSTAMP + 1}, s91",
              f"s_mov_b32 s{sSTAMP + 2}, s72", f"s_mov_b32 s{sSTAMP + 3}, s73")
            self.nstamp = 2
        at = [int(x) for x in c["tlbat"].split(",")]
        todo = [k for k in c["tlb"] if (k in "vo" and t == at[0]) or (k in "sgfy" and t == at[1])] if not moved else []
        if todo:
            e("; warm address translations used later", "s_mov_b64 exec, 1")
            for k in todo:
                if k == "v":
                    e(f"buffer_load_dword v{vT2}, off, {srd(S_V)}, 0 nt")
                if k == "o":
                    e(f"buffer_load_dword v{vT2}, off, {srd(S_WO)}, 0", "s_mov_b32 s6, 229372",
                      f"buffer_load_dword v{vT2}, off, {srd(S_WO)}, s6")
                if k == "s":
                    e(f"buffer_load_dword v{vT2}, off, {srd(S_WS)}, 0 sc1")
                if k == "f":
                    e(f"buffer_load_dword v{vT2}, off, {srd(S_FL)}, 0 sc1")
                if k == "g":
                    e(f"s_lshl3_add_u32 s3, s{sBR}, s{sB}", f"s_mul_i32 s5, s3, {16 * 57344}",
                      f"s_add_u32 s{S_K}, s{sWSP}, s5", f"s_addc_u32 s{S_K + 1}, s{sWSP + 1}, 0",
                      f"s_mov_b32 s{S_K + 2}, {16 * 57344}", f"s_mov_b32 s6, {16 * 57344 - 4}",
                      f"buffer_load_dword v{vT2}, off, {srd(S_K)}, 0 sc1",
                      f"buffer_load_dword v{vT2}, off, {srd(S_K)}, s6 sc1")
                if k == "y":
                    e(f"s_mov_b32 s{S_WQ}, s{sOUT}", f"s_mov_b32 s{S_WQ + 1}, s{sOUT + 1}", f"s_mov_b32 s{S_WQ + 2}, 917504",
                      f"s_mul_i32 s6, s2, 3584",
                      f"buffer_load_dword v{vT2}, off, {srd(S_WQ)}, s6 sc1")
            e("s_mov_b64 exec, -1")
        if not moved and str(t) in c["early"].split(","):
            return
        if t == 4:
            e("; key fragment and exchange addresses")
            e("v_and_b32 v100, 15, v0", "v_lshrrev_b32 v101, 4, v0",
              f"v_lshl_add_u32 v102, v100, 7, s{sM4096}",
              "v_bfe_u32 v103, v0, 1, 3",
              "v_xor_b32 v103, v103, v101",
              f"v_lshl_add_u32 v{vKR}, v103, 4, v102",
              f"v_xor_b32 v{vKR + 1}, 64, v{vKR}",
              f"s_mov_b32 s6, {EX}",
              f"v_lshl_add_u32 v{vExQ}, v0, 4, s6",
              f"s_lshr_b32 s5, s{sW}, 1", "s_lshl_b32 s5, s5, 12", "s_add_u32 s6, s6, s5",
              f"s_and_b32 s5, s{sW}, 1",
              "s_lshl3_add_u32 s7, s5, s6",
              f"v_lshl_add_u32 v{vOW}, v0, 4, s7",
              "s_lshl_b32 s5, s5, 9", "s_add_u32 s6, s6, s5",
              "v_lshrrev_b32 v102, 5, v0",
              "v_lshl_add_u32 v102, v102, 4, v100",
              "v_and_b32 v103, 1, v101",
              "v_lshl_add_u32 v102, v102, 1, v103",
              f"v_lshl_add_u32 v{vQW}, v102, 3, s6")
            e(*self.slice_setup(1))
        if t == 7 and c["help"]:
            e(f"s_mul_i32 s6, s{sH}, 229376", "s_add_u32 s96, s54, s6", "s_addc_u32 s97, s55, 0",
              "s_mov_b32 s98, 229376", "s_mov_b32 s99, 0x00020000")
        if t == c["helpat"] and c["help"]:
            n = c["help"]
            e(f"s_mul_i32 s6, s{sW}, {n * 128}", f"s_add_u32 s6, s6, s{sWOP}", f"s_add_u32 s6, s6, s{sWOJ}",
              f"s_cmp_eq_u32 s{sBR}, 0", f"s_cselect_b32 s6, s6, 0x{OOB:x}",
              "v_lshl_add_u32 v100, v0, 7, s6",
              f"s_mov_b32 exec_lo, 0x{((1 << n) - 1) & 0xffffffff:x}", f"s_mov_b32 exec_hi, 0x{((1 << n) - 1) >> 32:x}",
              f"buffer_load_dword v{vT2}, v100, s[96:99], 0 offen",
              "s_mov_b64 exec, -1")
        if t == 7:
            e("; remaining descriptors")
            self.make_srd(S_V, 40, 50, sKVOFF, 262144)
            e(f"s_mul_i32 s{sT0}, s{sH}, 229376")
            self.make_srd(S_WO, 44, 54, sT0, 229376)
            e(f"s_lshl3_add_u32 s{sT1}, s{sBR}, s{sB}", f"s_lshl4_add_u32 s6, s{sT1}, s{sH}",
              f"s_mul_i32 s{sT0}, s6, 57344",
              f"s_add_u32 s{S_WS}, s{sWSP}, s{sT0}", f"s_addc_u32 s{S_WS + 1}, s{sWSP + 1}, 0",
              f"s_mov_b32 s{S_WS + 2}, 57344", f"s_mov_b32 s{S_WS + 3}, 0x00020000")
            e(f"s_lshl_b32 s6, s{sT1}, 12", f"s_add_u32 s6, s6, 0x{FLAGS:x}")
            if c["wflag"]:
                e(f"s_add_u32 s6, s6, s{sM1024}", f"s_lshl2_add_u32 s{sT1}, s{sT1}, s{sW}")
            e(f"s_add_u32 s{S_FL}, s{sWSP}, s6", f"s_addc_u32 s{S_FL + 1}, s{sWSP + 1}, 0",
              f"s_mov_b32 s{S_FL + 2}, {64 if c['frep'] == 1 else 256 * c['frep']}", f"s_mov_b32 s{S_FL + 3}, 0x00020000",
              f"s_lshl_b32 s6, s{sT1}, 2",
              f"s_add_u32 s{S_DBG}, s{sDBGP}, s6", f"s_addc_u32 s{S_DBG + 1}, s{sDBGP + 1}, 0",
              f"s_mov_b32 s{S_DBG + 2}, 4",
              f"s_mov_b32 s6, s{sH}" if c["wflag"] else f"s_or_b32 s6, s{sH}, s{sW}", "s_cmp_eq_u32 s6, 0",
              f"s_cselect_b32 s6, 0, 0x{OOB:x}",
              f"v_lshl_add_u32 v{vLead}, v0, 2, s6")
        if t == 9:
            e("; value / output-weight fragment addresses")
            e(*self.slice_setup(2))
            e(*self.slice_setup(3))
            e("v_lshrrev_b32 v100, 2, v0",
              "v_bfe_u32 v101, v0, 3, 2",
              "v_and_b32 v102, 3, v0",
              f"v_xor_b32 v103, s{sW}, v101",
              "v_lshl_add_u32 v103, v103, 2, v102",
              "v_lshl_add_u32 v103, v100, 4, v103",
              f"s_add_u32 s6, s{sM4096}, 0x10000",
              f"v_lshl_add_u32 v{vVR}, v103, 3, s6")
            for p in range(1, 4):
                e(f"v_xor_b32 v{vVR + p}, {p * 4096}, v{vVR}")
            e("v_mul_u32_u24 v100, 896, v100",
              "v_lshl_add_u32 v100, v102, 3, v100",
              f"s_mul_i32 s6, s{sW}, 7")
            for m in range(4):
                e("v_xor_b32 v103, s6, v101", f"v_lshl_add_u32 v{vWoR + m}, v103, 5, v100")
                if m < 3:
                    e("s_add_u32 s6, s6, 1")
            e(f"v_add_u32 v{vExOwn}, s{sM4096}, v{vExQ}")
            for p in range(1, 4):
                e(f"v_xor_b32 v{vExOwn + p}, {p * 4096}, v{vExOwn}")
            e(f"s_mul_i32 s6, s{sW}, 14336",
              f"v_lshl_add_u32 v{vSt}, v0, 4, s6")
        if t == 17:
            e("; output-weight load offsets")
            cbits = struct.unpack("<I", struct.pack("<f", math.log2(math.e) / 16.0))[0]
            e(f"s_mov_b32 s{sC}, 0x{cbits:08x}", f"s_mov_b32 s{sC + 1}, 0x{cbits:08x}",
              f"s_mul_i32 s{sWOP}, s{sWSW}, {32 * 896}",
              f"s_sub_u32 s{sWOP + 1}, {32 * 896}, s{sWOP}",
              f"v_lshl_add_u32 v101, v0, 4, s{sM1024}")
            for u in range(7):
                e(f"v_add_u32 v102, {4096 * u}, v101",
                  "v_lshrrev_b32 v103, 8, v102",
                  "v_mul_u32_u24 v103, 147, v103",
                  "v_bfe_u32 v103, v103, 10, 2",
                  "v_lshlrev_b32 v103, 5, v103",
                  f"v_xor_b32 v{vWoD + u}, v103, v102")
        if t == c["coopat"] and "o" in c["coop"]:
            e(f"s_lshl2_add_u32 s6, s{sB}, s{sW}", f"s_mul_i32 s6, s6, {56 * 128}",
              f"v_lshlrev_b32 v{vT3}, 7, v0",
              "s_mov_b32 exec_hi, 0x00ffffff",
              f"buffer_load_dword v{vT2}, v{vT3}, {srd(S_WO)}, s6 offen",
              "s_mov_b32 exec_hi, -1")
        if t == 31 and c["rot2"] >= 0:
            assert self.issued == 36
            for j in range(4):
                sl = (j + c["rot2"]) & 3
                e(f"s_mov_b32 s{sSL + j}, {sl * 128}", f"s_mov_b32 s{sWOJ + j}, {sl * 64 * 896}")
        if t == 45 and c["keep2"]:
            e("; mask of this wave's output units that the workgroup reduces itself")
            e(f"s_and_b32 s5, s{sH}, 14", "s_lshl_b32 s5, s5, 1",
              f"s_mul_i32 s6, s{sW}, 7", f"s_sub_i32 s{sWQP + 1}, s5, s6",
              f"s_min_i32 s5, s{sWQP + 1}, 7", "s_lshl1_add_u32 s5, s5, 42",
              f"s_lshl_b32 s6, 0x55, s{sHP}", "s_mov_b32 s7, 0",
              "s_lshl_b64 s[6:7], s[6:7], s5",
              f"s_bfe_u32 s{sWQP}, s7, 0xe000a")
        if t == 33:
            e("; cross-wave reduction addresses; attention-output operand addresses")
            assert self.issued > 35
            e(f"s_lshl_b32 s6, s{sW}, 2",
              f"v_lshl_add_u32 v{vRed}, v0, 4, s6",
              f"v_and_b32 v{vSq}, 15, v0",
              f"v_lshlrev_b32 v{vSq}, 4, v{vSq}",
              f"v_add_u32 v{vSq + 1}, {EX + 16384}, v{vSq}",
              f"s_lshl_b32 s6, s{sWSW}, 12",
              f"v_add_u32 v{vExQ}, s6, v{vExQ}",
              f"v_xor_b32 v{vExOb}, 0x1000, v{vExQ}")

    def dma_groups(self, t):
        c = self.c
        kind, j, i = TILES[t]
        p, q = i >> 1, i & 1
        g = []
        if kind in ("k", "v"):
            slot = (t % 8) * 16384
            head = [f"s_add_u32 m0, s{sM4096}, {slot}",
                    f"s_add_u32 s{sSOFF}, s{sSL + j}, {i * 65536}"]
            if c["numa"]:
                head[1] = f"s_add_u32 s{sSOFF}, s{sSOFF}, 0x10000" if q else f"s_add_u32 s{sSOFF}, s{sSL + j}, s{sKP + p}"
            for u in range(4):
                vo = vKD + (u & 1) if kind == "k" else vVD
                s = S_K if kind == "k" else S_V
                ld = f"buffer_load_dwordx4 v{vo}, {srd(s)}, s{sSOFF} offen offset:{1024 * u} {c['aux_kv']} lds"
                g.append([I(x) for x in (head if u == 0 else []) + [ld]])
        else:
            base = ((t - q) % 8) * 16384
            for u in (range(4, 7) if q else range(4)):
                head = [f"s_add_u32 m0, s{sM1024}, {base + 4096 * u}"]
                if kind == "wq":
                    head.append(f"s_add_u32 s{sSOFF}, s{sSOFF}, 0x40000" if u else f"s_add_u32 s{sSOFF}, s{sWQP + p}, s{sSL + j}")
                    ld = f"buffer_load_dwordx4 v{vWqD}, {srd(S_WQ)}, s{sSOFF} offen {c['aux_w']} lds"
                else:
                    if u == 0:
                        head.append(f"s_add_u32 s{sSOFF}, s{sWOP + p}, s{sWOJ + j}")
                    ld = f"buffer_load_dwordx4 v{vWoD + u}, {srd(S_WO)}, s{sSOFF} offen {c['aux_w']} lds"
                g.append([I(x) for x in head + [ld]])
        for grp in g:
            grp[-1].tag = t
        return g

    @staticmethod
    def frag(t, n):
        return aF + 16 * (t & 1) + 4 * n

    @staticmethod
    def wo_read(dst, n, p, h):
        off = p * 32768 + h * 14336 + (n >> 2) * 128
        return I(f"ds_read_b64_tr_b16 {rng('a', dst, 2)}, v{vWoR + (n & 3)} offset:{off}")

    def read_groups(self, t):
        kind, j, i = TILES[t]
        p, q = i >> 1, i & 1
        g = []
        if kind == "wq":
            for n, k in enumerate(range(4, 7) if q else range(4)):
                for h in range(2):
                    g.append([I(f"ds_read_b64_tr_b16 {rng('a', self.frag(t, n) + 2 * h, 2)}, v{vWqR} offset:{p * 32768 + k * 4096 + h * 512}")])
        elif kind == "k":
            for k in range(2):
                for kt in range(2):
                    g.append([I(f"ds_read_b128 {rng('a', self.frag(t, 2 * k + kt), 4)}, v{vKR + k} offset:{i * 16384 + kt * 2048}")])
        elif kind == "v":
            for pp in range(4):
                for h in range(2):
                    g.append([I(f"ds_read_b64_tr_b16 {rng('a', self.frag(t, pp) + 2 * h, 2)}, v{vVR + pp} offset:{i * 16384 + h * 2048}")])
        elif kind == "wo" and self.c["ochain"]:
            for m, n in enumerate(range(2 * i, min(7, 2 * i + 2))):
                for pp in range(2):
                    for h in range(2):
                        g.append([self.wo_read(self.frag(t, 2 * m + pp) + 2 * h, n, pp, h)])
        elif kind == "wo":
            for m, n in enumerate(range(4, 7) if q else range(4)):
                for h in range(2):
                    g.append([self.wo_read(self.frag(t, m) + 2 * h, n, p, h)])
        return g

    @staticmethod
    def mfma(d, a, b, zero=False):
        dd = rng('v', d, 4)
        return I(f"v_mfma_f32_16x16x32_bf16 {dd}, {rng('a', a, 4)}, {b}, {'0' if zero else dd}")

    def order(self, nouter, ninner):
        return [(o, k if o % 2 == 0 else ninner - 1 - k) for o in range(nouter) for k in range(ninner)]

    def mfmas(self, t):
        kind, j, i = TILES[t]
        p, q = i >> 1, i & 1
        chain = self.c["chain"]
        m = []
        seen = set()

        def add(d, a, b, fresh):
            m.append(self.mfma(d, a, b, fresh and d not in seen))
            seen.add(d)
        if kind == "wq":
            ks = list(range(4, 7) if q else range(4))
            seq = self.order(4, len(ks)) if chain else [(qt, n) for n in range(len(ks)) for qt in range(4)]
            for qt, n in seq:
                add(vG1 + 4 * qt, self.frag(t, n), rng('a', aX + 16 * (7 * p + ks[n]) + 4 * qt, 4), i == 0)
        elif kind == "k":
            if chain:
                seq = [(o // 2, (o % 2) ^ ((o // 2) % 2), k) for o, k in self.order(8, 2)]
            else:
                seq = [(qt, kt, k) for k in range(2) for kt in range(2) for qt in range(4)]
            for qt, kt, k in seq:
                add(vS + 32 * i + 8 * qt + 4 * kt, self.frag(t, 2 * k + kt), rng('v', vQ + 16 * k + 4 * qt, 4), j == 0)
        elif kind == "v":
            seq = self.order(4, 4) if chain else [(qt, pp) for pp in range(4) for qt in range(4)]
            for qt, pp in seq:
                b = rng('v', vP + 16 * i + 4 * qt, 4) if pp == 0 else rng('a', aPP + 48 * i + 16 * (pp - 1) + 4 * qt, 4)
                add(vG1 + 4 * qt, self.frag(t, pp), b, i == 0)
        elif kind == "wo" and self.c["ochain"]:
            ns = list(range(2 * i, min(7, 2 * i + 2)))
            for o, pp in self.order(4 * len(ns), 2):
                mm, qt = o // 4, (o % 4 if (o // 4) % 2 == 0 else 3 - o % 4)
                add(vS + 16 * ns[mm] + 4 * qt, self.frag(t, 2 * mm + pp), rng('a', aB2 + 16 * pp + 4 * qt, 4), j == 0)
        elif kind == "wo":
            ns = list(range(4, 7) if q else range(4))
            seq = self.order(len(ns), 4) if chain else [(mm, qt) for mm in range(len(ns)) for qt in range(4)]
            for mm, qt in seq:
                add(vS + 16 * ns[mm] + 4 * qt, self.frag(t, mm), rng('a', aB2 + 16 * p + 4 * qt, 4), j == 0 and p == 0)
        return m

    @staticmethod
    def counted_waits(seq):
        out = []
        pending = []
        for ins in seq:
            need = [k for k, r in enumerate(pending) if r.writes & ins.reads]
            if need and ins.kind != "ds":
                left = len(pending) - 1 - max(need)
                out.append(I(f"s_waitcnt lgkmcnt({min(left, 14)})"))
                pending = pending[max(need) + 1:]
            out.append(ins)
            if ins.kind == "ds":
                pending.append(ins)
        return out

    def max_ops(self, i, dst):
        ops = []
        for step in range(4):
            for qt in range(4):
                r = vS + 32 * i + 8 * qt
                d = dst + qt
                if step == 0:
                    ops.append(I(f"v_max3_f32 v{d}, v{r}, v{r + 1}, v{r + 2}"))
                elif step < 3:
                    ops.append(I(f"v_max3_f32 v{d}, v{r + 2 * step + 1}, v{r + 2 * step + 2}, v{d}"))
                else:
                    ops.append(I(f"v_max_f32 v{d}, v{r + 7}, v{d}"))
        ops += [I(f"v_mul_f32 v{dst + qt}, s{sC}, v{dst + qt}") for qt in range(4)]
        return ops

    def exp_ops(self, i, m, qts=range(4)):
        g = []
        for qt in qts:
            src, mod = bcast(m + qt, 3)
            for half in range(2):
                r = vS + 32 * i + 8 * qt + 4 * half
                g.append([I(f"v_pk_fma_f32 {pair(r + x)}, {pair(r + x)}, s[{sC}:{sC + 1}], {src} {mod} neg_lo:[0,0,1] neg_hi:[0,0,1]")
                          for x in (0, 2)] + [I(f"v_exp_f32 v{r + x}, v{r + x}") for x in range(2)])
                g.append([I(f"v_exp_f32 v{r + x}, v{r + x}") for x in range(2, 4)])
        return g

    def sum_ops(self, i, dst):
        ops = []
        for step in range(4):
            for qt in range(4):
                r = vS + 32 * i + 8 * qt
                tmp = vT + 2 * qt
                if step == 0:
                    ops.append(I(f"v_pk_add_f32 {pair(tmp)}, {pair(r)}, {pair(r + 2)}"))
                elif step < 3:
                    ops.append(I(f"v_pk_add_f32 {pair(tmp)}, {pair(tmp)}, {pair(r + 2 + 2 * step)}"))
                else:
                    ops.append(I(f"v_add_f32 v{dst + qt}, v{tmp}, v{tmp + 1}"))
        return ops

    def early_exp(self, i):
        m = vMC + 4 * i
        g = [[x] for x in self.max_ops(i, m)] + self.exp_ops(i, m)
        if i < 2:
            g += [[x] for x in self.sum_ops(i, vSUM + 4 * i)]
        return g

    def pack_ops(self, i):
        ops = []
        for qt in range(4):
            r = vS + 32 * i + 8 * qt
            p = vP + 16 * i + 4 * qt
            if i < self.c["nearly"]:
                src, mod = bcast(vMC + 4 * i + qt, 2)
                ops += [I(f"v_pk_mul_f32 {pair(r + x)}, {pair(r + x)}, {src} {mod}") for x in range(0, 8, 2)]
            for x in range(0, 8, 2):
                if i >= 2:
                    ops.append(I(f"v_pk_add_f32 {pair(vL + 2 * qt)}, {pair(vL + 2 * qt)}, {pair(r + x)}"))
                ops.append(I(f"v_cvt_pk_bf16_f32 v{p + x // 2}, v{r + x}, v{r + x + 1}"))
        return ops

    def p_writes(self, i):
        return [[I(f"ds_write_b128 v{vExOwn}, {rng('v', vP + 16 * i + 4 * qt, 4)} offset:{(i & 1) * 16384 + qt * 1024}")]
                for qt in range(4)]

    def p_reads(self, i):
        return [[I(f"ds_read_b128 {rng('a', aPP + 48 * i + 16 * (pp - 1) + 4 * qt, 4)}, v{vExOwn + pp} offset:{(i & 1) * 16384 + qt * 1024}")]
                for qt, pp in ([(qt, pp) for qt in range(4) for pp in range(1, 4)] if self.c["chain"]
                               else [(qt, pp) for pp in range(1, 4) for qt in range(4)])]

    def lane_reduce(self, op, r):
        self.e(f"v_permlane32_swap_b32 v{r}, v{r + 2}",
               f"v_permlane32_swap_b32 v{r + 1}, v{r + 3}",
               f"{op} v{r}, v{r}, v{r + 2}",
               f"{op} v{r + 1}, v{r + 1}, v{r + 3}",
               f"v_permlane16_swap_b32 v{r}, v{r + 1}",
               f"{op} v{r}, v{r}, v{r + 1}")

    def publish_groups(self, scale):
        g = []
        for qt in range(4):
            r = vG1 + 4 * qt
            ops = []
            if scale:
                src, mod = bcast(vRL + qt, 2)
                ops += [I(f"v_pk_mul_f32 {pair(r + x)}, {pair(r + x)}, {src} {mod}") for x in (0, 2)]
            ops += [I(f"v_cvt_pk_bf16_f32 v{vCV + 2 * qt}, v{r}, v{r + 1}"),
                    I(f"v_cvt_pk_bf16_f32 v{vCV + 2 * qt + 1}, v{r + 2}, v{r + 3}")]
            g.append((ops, [I(f"ds_write_b64 v{vOW if scale else vQW}, {pair(vCV + 2 * qt)} offset:{qt * 1024}")]))
        return g

    def g1_publish(self, scale, skip=0):
        g = self.publish_groups(scale)[skip:]
        self.eg([ops for ops, _ in g] + [wr for _, wr in g])

    def with_publish(self, seq, mf, scale):
        per = len(mf) // 4
        out = list(seq)
        for qt, (ops, wr) in list(enumerate(self.publish_groups(scale)))[:3]:
            at = out.index(mf[per * (qt + 2) - 1]) + 1
            out[at:at] = ops + wr
        return out

    def b2_reads(self, kind):
        g = []
        qt_major = self.c["chain"] and (kind != "wo" or self.c["ochain"])
        for x in range(8):
            k, qt = (x % 2, x // 2) if qt_major else (x // 4, x % 4)
            if True:
                if kind == "k":
                    g.append([I(f"ds_read_b128 {rng('v', vQ + 16 * k + 4 * qt, 4)}, v{vExQ} offset:{k * 4096 + qt * 1024}")])
                else:
                    g.append([I(f"ds_read_b128 {rng('a', aB2 + 16 * k + 4 * qt, 4)}, v{vExOb if k else vExQ} offset:{qt * 1024}")])
        return g

    def weave(self, mf, front, reads, spread, late):
        if not mf:
            return sum(front + reads + spread + late, [])
        n = len(mf)
        d = self.c["dgap"]
        while d > 1 and d * (len(front) + len(late) + len(spread)) > n:
            d -= 1
        gaps = [[] for _ in range(n)]
        taken = set()

        def put(at, g):
            at = min(n - 1, max(0, at))
            gaps[at].append(g)
            taken.add(at)
        for k, g in enumerate(front):
            put(d * k, g)
        lo = d * len(front)
        hi = n - d * len(late)
        for k, g in enumerate(spread):
            put(lo + (2 * k + 1) * max(hi - lo, 0) // (2 * len(spread)), g)
        for k, g in enumerate(late):
            put(n - 1 - d * (len(late) - 1 - k), g)
        free = [k for k in range(n - 3) if k not in taken] or list(range(n))
        per = max(self.c["rpg"], -(-len(reads) // len(free)), 1)
        for k, g in enumerate(reads):
            gaps[free[k // per]].insert(k % per, g)
        out = []
        for m, gs in zip(mf, gaps):
            out.append(m)
            for g in gs:
                out += g
        return out

    def body(self):
        e = self.e
        c = self.c
        for _ in range(c["shift"]):
            e("s_nop 0")
        e("; x fragments")
        self.sync(3)
        if c["stamps"]:
            e("s_mov_b32 s90, s98", "s_mov_b32 s91, s99", "s_memrealtime s[72:73]")
        xr = []
        for k in range(14):
            for qt in range(4):
                va = (108 if qt < 2 else 110) + (k >= 7)
                xr.append([I(f"ds_read_b128 {rng('a', aX + 16 * k + 4 * qt, 4)}, v{va} offset:{qt * 16384 + (k % 7) * 64}")])
        later = {}
        if c["xsplit"]:
            keep = []
            for n, g in enumerate(xr):
                k, qt = divmod(n, 4)
                if qt < 2 and k >= 4:
                    later.setdefault(4 if k < 7 else 5 if k < 11 else 6, []).append(g)
                else:
                    keep.append(g)
            xr = keep
        self.eg(self.dma_at(3, "f") + xr[:28] + self.dma_at(3, "s") + self.dma_at(3, "l") + self.dma_at(3, "m") + xr[28:] + self.dma_at(3, "b"))
        for t in range(4, 64):
            kind, j, i = TILES[t]
            e(f"; step {t}: tile {kind}{j}_{i}")
            if t in (12, 36, 44, 60):
                self.stamp()
            kl = kind == "k" and (str(i) in c["klate"].split(",") and t < 32 or str(t) in c["klate"].split(","))
            self.sync(t, upto=t - 1 if kl else None)
            for item in c["athr"].split("/"):
                if item and int(item.split(":")[0]) == t:
                    n = max(0, self.younger(t - 1 if kl else self.cover(t)) - int(item.split(":")[1]))
                    e(f"s_cmp_lg_u32 s{sBR}, 0", f"s_cbranch_scc1 L_thr{t}", f"s_waitcnt vmcnt({n})", f"L_thr{t}:")
            front = self.dma_at(t, "f")
            spread = self.dma_at(t, "s")
            late = self.dma_at(t, "l")
            if t == int(c["rdy"].split(",")[1]):
                spread.append([I(f"v_mov_b32 v{vRdy}, 1"),
                               I(f"buffer_store_dword v{vRdy}, v{vLead}, {srd(S_DBG)}, 0 offen sc1")])
            if t == int(c["rdy"].split(",")[2]):
                spread.append([I(f"buffer_load_dword v{vRdy}, off, {srd(S_DBG)}, 0 sc1")])
            reads = self.read_groups(t) + later.get(t, [])
            mf = self.mfmas(t - 1) if t > 4 and t != 36 else []
            if c["ochain"] and (kind, i) == ("wo", 0):
                reads = []
            piped = c["ppub"] and c["chain"] and (kind, i) in (("k", 0), ("wo", 0)) and t != 40 and not kl
            if kl and t in (34, 35):
                ex = self.early_exp(t - 34)
                self.eg(front)
                e(*interleave(mf, ex[:36]))
                self.eg(spread)
                e(f"s_waitcnt vmcnt({self.younger(t)})")
                self.eg(reads + ex[36:] + late)
            elif kl and i == 0:
                e(*self.weave(mf, front, [], spread, late))
            elif kl:
                cut = len(mf) - c["kcut"]
                head = (sum(self.b2_reads(kind), []) if i == 1 else []) + self.weave(mf[:cut], front, [], spread, [])
                e(*self.counted_waits(head))
                e(f"s_waitcnt vmcnt({self.younger(t)}) lgkmcnt(0)")
                e(*self.weave(mf[cut:], [], reads, [], late))
            elif (kind, i) in (("k", 1), ("wo", 1)):
                b2 = self.b2_reads(kind)
                if c["ochain"] and kind == "wo":
                    r0 = self.read_groups(t - 1)
                    b2 = r0[:4] + b2 + r0[4:]
                e(*self.counted_waits(sum(b2 + front, []) + self.weave(mf, [], reads, spread, late)))
            elif t in (34, 35):
                ex = self.early_exp(t - 34)
                e(*interleave(mf[:4], front + reads))
                e(*interleave(mf[4:], ex[:36]))
                self.eg(spread + ex[36:] + late)
            elif t == 36:
                self.softmax_head(front, reads, spread, late)
            elif t in (37, 38, 39) and c["smx"]:
                late_exp = {3: {1: [(3, (2, 3))]}, 2: {1: [(2, (2, 3)), (3, (0,))], 2: [(3, (1, 2, 3))]}}[c["nearly"]].get(i, [])
                valu = sum((sum(self.exp_ops(ti, vM, qs), []) for ti, qs in late_exp), []) + self.pack_ops(i)
                pr = self.p_reads(i - 1)
                self.eg(front)
                part = len(valu) // 5
                for k in range(4):
                    self.eg(pr[3 * k:3 * k + 3])
                    e(*valu[part * k:part * (k + 1)])
                e(*valu[part * 4:])
                wr = self.p_writes(i)
                if i == 3:
                    for qt in range(4):
                        e(f"v_add_f32 v{vRL + qt}, v{vL + 2 * qt}, v{vL + 2 * qt + 1}")
                    self.lane_reduce("v_add_f32", vRL)
                    wr[0] = [I(f"ds_write_b32 v{vRed}, v{vRL} offset:{LSUM}")] + wr[0]
                e("s_waitcnt lgkmcnt(0)")
                gaps = [[] for _ in mf]
                for k in range(4):
                    gaps[4 * k] += wr[k]
                    gaps[4 * k + 3 if k < 3 else 10] += reads[2 * k] + reads[2 * k + 1]
                dm = spread + late
                for k, g in enumerate(dm[:4]):
                    gaps[4 * k + 2 if k != 2 else 9] += g
                for m, g in zip(mf, gaps):
                    e(m, *g)
                self.eg(dm[4:])
            elif t in (37, 38, 39):
                self.eg(self.p_reads(i - 1) + front)
                if i == 1:
                    self.eg(self.exp_ops(3, vM, (2, 3)))
                e(*self.pack_ops(i))
                wr = self.p_writes(i)
                if i == 3:
                    for qt in range(4):
                        e(f"v_add_f32 v{vRL + qt}, v{vL + 2 * qt}, v{vL + 2 * qt + 1}")
                    self.lane_reduce("v_add_f32", vRL)
                    wr.insert(0, [I(f"ds_write_b32 v{vRed}, v{vRL} offset:{LSUM}")])
                e("s_waitcnt lgkmcnt(0)")
                e(*self.weave(mf, wr, reads, spread, late))
            elif t == 40:
                tmp = vS + 112
                lr = [[I(f"ds_read_b128 {rng('v', tmp + 4 * qt, 4)}, v{vSq} offset:{LSUM + qt * 256}")] for qt in range(4)]
                extra = []
                for qt in range(4):
                    r = tmp + 4 * qt
                    extra.append([I(f"v_add_f32 v{r}, v{r}, v{r + 1}"), I(f"v_add_f32 v{r + 2}, v{r + 2}, v{r + 3}")])
                for qt in range(4):
                    r = tmp + 4 * qt
                    extra.append([I(f"v_add_f32 v{r}, v{r}, v{r + 2}"), I(f"v_rcp_f32 v{vRL + qt}, v{r}")])
                seq = sum(self.p_reads(3) + front, []) + interleave(mf[:4], lr) + interleave(mf[4:10], reads) + interleave(mf[10:], extra)
                e(*self.counted_waits(seq))
                self.eg(spread + late)
            elif piped:
                e(*self.with_publish(self.weave(mf, front, reads, spread, late), mf, kind == "wo"))
            elif t == 63 and c["nolag"]:
                self.eg(reads + front + spread + late)
            else:
                e(*self.weave(mf, front, reads, spread, late))
            if t != 36:
                self.eg(self.dma_at(t, "m"))
            if (kind, i) in (("k", 0), ("wo", 0)):
                self.g1_publish(kind == "wo", 3 if piped else 0)
                if kl:
                    e(f"s_waitcnt vmcnt({self.younger(t)})")
                    self.eg(reads)
            if t == 62 and c["nolag"]:
                e("s_waitcnt lgkmcnt(0)", *self.mfmas(62))
            self.deferred(t)
            if t == 35:
                e("; last score tile and row maximum")
                e("s_waitcnt lgkmcnt(0)")
                mf = self.mfmas(t)
                e(*interleave(mf, self.early_exp(2) if c["nearly"] == 3 else [[x] for x in self.max_ops(2, vMC + 8)]))
                e(*self.max_ops(3, vM))
                for qt in range(4):
                    e(f"v_max3_f32 v{vM + qt}, v{vM + qt}, v{vMC + qt}, v{vMC + 4 + qt}")
                for qt in range(4):
                    e(f"v_max_f32 v{vM + qt}, v{vM + qt}, v{vMC + 8 + qt}")
                self.lane_reduce("v_max_f32", vM)
                e(f"v_add_u32 v{vT}, {EX + 16384}, v{vRed}",
                  f"ds_write_b32 v{vT}, v{vM}")
            self.eg(self.dma_at(t, "b"))
        assert self.issued == len(TILES)
        self.last_slice()
        self.fused_reduce()
        self.finish()

    def softmax_head(self, front, reads, spread, late):
        e = self.e
        tmp = 96
        for qt in range(4):
            e(f"ds_read_b128 {rng('v', tmp + 4 * qt, 4)}, v{vSq + 1} offset:{qt * 256}")
        self.eg(front + reads)
        e(f"s_waitcnt lgkmcnt({len(reads)})")
        for qt in range(4):
            r = tmp + 4 * qt
            e(f"v_max3_f32 v{r}, v{r}, v{r + 1}, v{r + 2}")
        for qt in range(4):
            r = tmp + 4 * qt
            e(f"v_max_f32 v{vM + qt}, v{r}, v{r + 3}")
        for x in range(4 * self.c["nearly"]):
            e(f"v_sub_f32 v{vMC + x}, v{vMC + x}, v{vM + x % 4}")
        for x in range(4 * self.c["nearly"]):
            e(f"v_exp_f32 v{vMC + x}, v{vMC + x}")
        for qt in range(4):
            e(f"v_mul_f32 v{vL + 2 * qt}, v{vSUM + qt}, v{vMC + qt}",
              f"v_mul_f32 v{vL + 2 * qt + 1}, v{vSUM + 4 + qt}, v{vMC + 4 + qt}")
        e(*self.pack_ops(0))
        ex = self.exp_ops(self.c["nearly"], vM, (0, 1))
        if self.c["smx"]:
            self.eg(spread)
            for k, wr in enumerate(self.p_writes(0)):
                self.eg([wr] + ex[2 * k:2 * k + 2])
            self.eg(late + self.dma_at(36, "m"))
        else:
            self.eg(spread + self.p_writes(0) + late + self.dma_at(36, "m") + ex)

    def last_slice(self):
        e = self.e
        e("; last value tile, then the last output-projection slice column block by column block")
        e("s_waitcnt lgkmcnt(0)")
        mf = self.mfmas(63)
        if self.c["ppub"] and self.c["chain"]:
            e(*self.with_publish(mf, mf, True))
            self.g1_publish(True, 3)
        else:
            e(*mf)
            self.g1_publish(True)
        self.sync(67, 60, 67, True)
        self.stamp()
        self.eg(self.b2_reads("last"))

        def reads(n):
            return [[self.wo_read(aF + 8 * (n % 3) + 4 * p + 2 * h, n, p, h)] for p in range(2) for h in range(2)]

        def stores(n):
            g = []
            for qp in range(2):
                u = 2 * n + qp
                d = vP + 4 * u
                r = vS + 16 * n + 8 * qp
                cv = [I(f"v_cvt_pk_bf16_f32 v{d + x}, v{r + 2 * x}, v{r + 2 * x + 1}") for x in range(4)]
                g += [cv[:2], cv[2:]]
                grp = []
                if self.c["keep2"]:
                    grp += [I(f"s_bitcmp1_b32 s{sWQP}, {u}"), I(f"s_cselect_b32 s{sSOFF}, s{sT2}, {(u // 4) * 4096}")]
                elif self.c["keep"]:
                    grp += [I(f"s_cmp_eq_u32 s{sH}, {u}"), I(f"s_cselect_b32 s{sSOFF}, s{sT2}, {(u // 4) * 4096}")]
                elif u % 4 == 0:
                    grp.append(I(f"s_mov_b32 s{sSOFF}, {u * 1024}"))
                grp.append(I(f"buffer_store_dwordx4 {rng('v', d, 4)}, v{vSt}, {srd(S_WS)}, s{sSOFF} offen offset:{(u % 4) * 1024} {self.c['aux_st']}"))
                g.append(grp)
            return g

        def blocks(lag):
            for n in range(7):
                e("s_waitcnt lgkmcnt(0)")
                mf = [self.mfma(vS + 16 * n + 4 * qt, aF + 8 * (n % 3) + 4 * p, rng('a', aB2 + 16 * p + 4 * qt, 4))
                      for qt, p in (self.order(4, 2) if self.c["chain"] else [(qt, p) for p in range(2) for qt in range(4)])]
                e(*interleave(mf[:2], reads(n + 1) if n < 6 else []))
                fill = []
                if n > 0:
                    fill += [g for g in stores(n - 1) if g[-1].kind != "vmem" or lag == 1]
                if lag > 1 and n >= lag:
                    fill += [g for g in stores(n - lag) if g[-1].kind == "vmem"]
                e(*interleave(mf[2:], fill))
            if lag == 1:
                self.eg(stores(6))
            else:
                self.eg([g for g in stores(6) if g[-1].kind != "vmem"])
                for n in range(max(0, 7 - lag), 7):
                    self.eg([g for g in stores(n) if g[-1].kind == "vmem"])

        e(f"s_mov_b32 s{sT2}, 0x{OOB:x}")
        self.eg(reads(0))
        la, lb = (int(x) for x in self.c["slag"].split(","))
        if la == lb:
            blocks(la)
        else:
            e(f"s_cmp_eq_u32 s{sBR}, 0", "s_cbranch_scc1 L_tail_a")
            blocks(lb)
            e("s_branch L_tail_done", "L_tail_a:")
            blocks(la)
            e("L_tail_done:")
        self.stamp()

    def fused_reduce(self):
        e = self.e
        c = self.c
        e("; publish, wait for the other heads of this batch, reduce one slab of the output")
        e(f"s_lshl3_add_u32 s3, s{sBR}, s{sB}",
          f"s_mul_i32 s4, s{sW}, 14" if c["wflag"] or c["keep"] else f"s_lshl_b32 s4, s{sH}, 2",
          f"s_add_u32 s4, s4, s{sH if c['wflag'] or c['keep'] else sW}")
        if c["omap"]:
            e(f"s_lshr_b32 s4, s{sH}, 1", f"s_lshl2_add_u32 s4, s4, s{sW}", f"s_lshl1_add_u32 s4, s4, s{sHP}")
        e(
          f"s_mul_i32 s5, s3, {16 * 57344}",
          f"s_add_u32 s{S_K}, s{sWSP}, s5", f"s_addc_u32 s{S_K + 1}, s{sWSP + 1}, 0",
          f"s_mov_b32 s{S_K + 2}, {16 * 57344}",
          f"s_mov_b32 s{S_V}, s{sOUT}", f"s_mov_b32 s{S_V + 1}, s{sOUT + 1}", f"s_mov_b32 s{S_V + 2}, 917504",
          "s_lshl_b32 s5, s4, 10", "v_lshl_add_u32 v1, v0, 4, s5",
          "s_and_b32 s5, s4, 1",
          "s_lshr_b32 s6, s4, 1",
          f"s_lshl1_add_u32 s5, s{sB}, s5",
          f"s_mul_i32 s{sT0}, s5, {32 * 1792}",
          f"s_mul_i32 s7, s{sBR}, 896", f"s_add_u32 s{sT0}, s{sT0}, s7",
          "s_lshl_b32 s6, s6, 5", f"s_add_u32 s{sT0}, s{sT0}, s6",
          "v_and_b32 v3, 15, v0", "v_mul_u32_u24 v2, 1792, v3",
          "v_lshrrev_b32 v4, 4, v0", "v_lshl_add_u32 v2, v4, 3, v2",
          f"v_add_u32 v2, s{sT0}, v2",
          f"s_and_b32 s5, s{sH}, {c['frep'] - 1}", "s_lshl_b32 s5, s5, 8",
          "v_lshl_add_u32 v3, v3, 2, s5",
          f"s_lshl_b32 s5, s{sH}, 2", f"s_cmp_eq_u32 s{sW}, {'s%d' % sW if c['wflag'] else 0}", f"s_cselect_b32 s5, s5, 0x{OOB:x}",
          "v_lshl_add_u32 v4, v0, 8, s5",
          "v_mov_b32 v5, 1",
          f"v_readfirstlane_b32 s6, v{vRdy}",
          f"s_mov_b32 s7, {SPIN_MAX}",
          "s_cmp_eq_u32 s6, 1", "s_cbranch_scc1 L_ready",
          "L_rdy_spin:",
          f"buffer_load_dword v{vRdy}, off, {srd(S_DBG)}, 0 sc1",
          "s_waitcnt vmcnt(0)",
          f"v_readfirstlane_b32 s6, v{vRdy}",
          "s_sub_u32 s7, s7, 1", "s_cmp_eq_u32 s7, 0", "s_cbranch_scc1 L_ready",
          "s_cmp_eq_u32 s6, 1", "s_cbranch_scc0 L_rdy_spin",
          "L_ready:")
        if c["keep2"]:
            e(f"s_mov_b32 s5, {EX + 16384}", "v_lshl_add_u32 v7, v0, 4, s5")
            for k in range(4):
                e(f"s_add_u32 s6, s{sWQP + 1}, {k}", "s_cmp_lt_u32 s6, 7", f"s_cbranch_scc0 L_own{k}",
                  f"s_lshl1_add_u32 s6, s6, s{sHP}", "s_lshl_b32 s6, s6, 2",
                  "s_set_gpr_idx_on s6, gpr_idx(SRC0)", "s_nop 1")
                for x in range(4):
                    e(f"v_mov_b32 v{8 + 4 * k + x}, v{vP + x}")
                e("s_set_gpr_idx_off", "s_nop 1",
                  f"ds_write_b128 v7, {rng('v', 8 + 4 * k, 4)} offset:{k * 1024}",
                  f"L_own{k}:")
            e(f"v_add_u32 v7, s{sM1024}, v7", "s_waitcnt lgkmcnt(0)")
        if c["keep"]:
            e(f"s_min_u32 s6, s{sH}, 13", "s_lshl_b32 s6, s6, 2", "s_set_gpr_idx_on s6, gpr_idx(SRC0)", "s_nop 1")
            for x in range(4):
                e(f"v_mov_b32 v{8 + x}, v{vP + x}")
            e("s_set_gpr_idx_off", "s_nop 1")
        e("s_waitcnt vmcnt(0)")
        self.stamp()
        if not c["wflag"]:
            e("s_barrier")
        e(f"buffer_store_dword v5, v4, {srd(S_FL)}, 0 offen sc1",
          f"s_cmp_ge_u32 s{sH}, 14", "s_cbranch_scc1 L_fin",
          f"s_mov_b32 s7, {SPIN_MAX}",
          "s_mov_b32 s4, 0x00003f80", "s_mov_b32 s5, 0x3f800000", f"s_mov_b32 s6, {16 * 1792}")
        acc = 128
        if c["eg"]:
            self.early_gather(acc)
        else:
            n = c["ppoll"]
            if c["keep2"]:
                e("ds_read_b128 v[8:11], v7")
            if c["onepoll"]:
                e(f"s_cmp_lg_u32 s{sW}, 0", "s_cbranch_scc1 L_go")
            for k in range(n):
                e(f"buffer_load_dword v{24 + k}, v3, {srd(S_FL)}, 0 offen sc1", f"s_sleep {c['sleep']}")
            e("; bounded poll of the group's flags", "L_poll:")
            for k in range(n + 1):
                e(f"buffer_load_dword v{24 + (k + n) % (n + 1)}, v3, {srd(S_FL)}, 0 offen sc1",
                  f"s_waitcnt vmcnt({n})",
                  f"v_cmp_ne_u32 vcc, 1, v{24 + k}",
                  "s_nop 1",
                  "s_cbranch_vccz L_go")
                if c["sleep"]:
                    e(f"s_sleep {c['sleep']}")
            e("s_sub_u32 s7, s7, 1", "s_cmp_eq_u32 s7, 0", "s_cbranch_scc0 L_poll",
              "L_go:")
            if c["onepoll"]:
                e("s_barrier")
            if c["keep"] or c["keep2"]:
                nl = 15
                for k in range(nl):
                    e(f"s_cmp_le_u32 s{sH}, {k}", f"s_cselect_b32 s{sSOFF}, {k + 1}, {k}", f"s_mul_i32 s{sSOFF}, s{sSOFF}, 57344",
                      f"buffer_load_dwordx4 {rng('v', 64 + 4 * k, 4)}, v1, {srd(S_K)}, s{sSOFF} offen {c['aux_rd']}")
                e("s_waitcnt lgkmcnt(0)")
                for x in range(4):
                    for hi in range(2):
                        e(f"v_dot2_f32_bf16 v{acc + 2 * x + hi}, v{8 + x}, s{4 + hi}, 0")
            else:
                nl = 16
                e(f"s_mov_b32 s{sSOFF}, 0")
                for h in range(16):
                    e(f"buffer_load_dwordx4 {rng('v', 64 + 4 * h, 4)}, v1, {srd(S_K)}, s{sSOFF} offen {c['aux_rd']}")
                    if h < 15:
                        e(f"s_add_u32 s{sSOFF}, s{sSOFF}, 57344")
            for h in range(nl):
                e(f"s_waitcnt vmcnt({nl - 1 - h})")
                for x in range(4):
                    for hi in range(2):
                        a = acc + 2 * x + hi
                        e(f"v_dot2_f32_bf16 v{a}, v{64 + 4 * h + x}, s{4 + hi}, {'0' if h == 0 and nl == 16 else 'v%d' % a}")
        for k in range(4):
            e(f"v_cvt_pk_bf16_f32 v{44 + k}, v{acc + 2 * k}, v{acc + 1 + 2 * k}")
        e(f"buffer_store_dwordx2 v[44:45], v2, {srd(S_V)}, 0 offen {c['aux_out']}",
          f"buffer_store_dwordx2 v[46:47], v2, {srd(S_V)}, s6 offen {c['aux_out']}")
        e("L_fin:")

    def early_gather(self, acc):
        e = self.e
        c = self.c
        n = c["eg"]
        ng = 16 // n
        full = (1 << ng) - 1
        sDone, sPend, sPrev, sNew = sSL, sSL + 1, sSL + 2, sSL + 3
        e(f"s_mov_b32 s{sDone}, 0", f"s_mov_b32 s{sPend}, 0",
          "L_poll:",
          f"s_mov_b32 s{sPrev}, s{sPend}", f"s_mov_b32 s{sPend}, 0",
          f"s_cmp_eq_u32 s{sDone}, {full}", "s_cbranch_scc1 L_last",
          f"buffer_load_dword v6, v3, {srd(S_FL)}, 0 offen sc1",
          "s_sub_u32 s7, s7, 1",
          "s_waitcnt vmcnt(0)",
          "v_cmp_eq_u32 vcc, 1, v6",
          "s_cmp_eq_u32 s7, 0",
          f"s_cselect_b32 s{sNew}, -1, vcc_lo")
        for k in range(ng):
            m = ((1 << n) - 1) << (n * k)
            e(f"s_bitcmp1_b32 s{sDone}, {k}", f"s_cbranch_scc1 L_noload{k}",
              f"s_and_b32 s3, s{sNew}, {m}", f"s_cmp_eq_u32 s3, {m}", f"s_cbranch_scc0 L_noload{k}",
              f"s_bitset1_b32 s{sPend}, {k}", f"s_bitset1_b32 s{sDone}, {k}")
            for h in range(n * k, n * k + n):
                e(f"s_mov_b32 s{sSOFF}, {h * 57344}",
                  f"buffer_load_dwordx4 {rng('v', 64 + 4 * h, 4)}, v1, {srd(S_K)}, s{sSOFF} offen {c['aux_rd']}")
            e(f"L_noload{k}:")
        e("s_branch L_accum", "L_last:", "s_waitcnt vmcnt(0)", "L_accum:")
        for k in range(ng):
            e(f"s_bitcmp1_b32 s{sPrev}, {k}", f"s_cbranch_scc0 L_noacc{k}")
            for h in range(n * k, n * k + n):
                for x in range(4):
                    for hi in range(2):
                        a = acc + 8 * k + 2 * x + hi
                        e(f"v_dot2_f32_bf16 v{a}, v{64 + 4 * h + x}, s{4 + hi}, {'0' if h == n * k else 'v%d' % a}")
            e(f"L_noacc{k}:")
        e(f"s_cmp_lg_u32 s{sPend}, 0", "s_cbranch_scc1 L_poll",
          f"s_cmp_eq_u32 s{sDone}, {full}", "s_cbranch_scc1 L_sum")
        if c["sleep"]:
            e(f"s_sleep {c['sleep']}")
        e("s_branch L_poll", "L_sum:", "s_nop 2")
        step = 1
        while step < ng:
            for k in range(0, ng, 2 * step):
                for x in range(0, 8, 2):
                    e(f"v_pk_add_f32 {pair(acc + 8 * k + x)}, {pair(acc + 8 * k + x)}, {pair(acc + 8 * (k + step) + x)}")
            step *= 2

    def finish(self):
        e = self.e
        if self.c["stamps"]:
            e("s_waitcnt vmcnt(0)")
            while self.nstamp < 10:
                self.stamp()
            e("s_waitcnt lgkmcnt(0)",
              f"s_lshl2_add_u32 s6, s2, s{sW}", "s_lshl_b32 s6, s6, 7",
              "s_add_u32 s6, s6, 0x1000000",
              f"s_add_u32 s{S_WS}, s{sWSP}, s6", f"s_addc_u32 s{S_WS + 1}, s{sWSP + 1}, 0",
              f"s_mov_b32 s{S_WS + 2}, 128",
              "v_lshlrev_b32 v4, 2, v0",
              "v_mov_b32 v0, 0")
            if self.c["stamps"] == 2:
                e(f"v_writelane_b32 v{vT3}, s98, 60", "s_memtime s[96:97]", "s_waitcnt lgkmcnt(0)",
                  "v_mov_b32 v2, s96", "v_mov_b32 v3, s100",
                  f"buffer_store_dwordx2 v[2:3], v0, {srd(S_WS)}, 0 offen offset:120",
                  f"s_lshl2_add_u32 s7, s2, s{sW}", "s_lshl_b32 s7, s7, 9",
                  "s_add_u32 s7, s7, 0x1100000",
                  f"s_add_u32 s{S_X}, s{sWSP}, s7", f"s_addc_u32 s{S_X + 1}, s{sWSP + 1}, 0", f"s_mov_b32 s{S_X + 2}, 512",
                  f"buffer_store_dword v{vT2}, v4, {srd(S_X)}, 0 offen",
                  f"buffer_store_dword v{vT3}, v4, {srd(S_X)}, 0 offen offset:256")
            for k in range(10):
                r = sSTAMP + 2 * k
                e(f"v_mov_b32 v2, s{r}", f"v_mov_b32 v3, s{r + 1}",
                  f"buffer_store_dwordx2 v[2:3], v0, {srd(S_WS)}, 0 offen offset:{8 * k}")

    def main(self):
        self.prologue()
        self.body()
        self.e("L_main_end:", "s_endpgm")


HEADER = """; Fused Q-projection / attention / output-projection for both branches, one launch.
; Kernarg (8-byte pointers): A_x A_k A_v A_wq A_wo B_x B_k B_v B_wq B_wo out debug ws.
; One workgroup (4 waves) per (branch, batch, head); ids 8 apart share weights / grouped K,V through L2.
; Each workgroup writes its bf16 partial of out to ws with write-through stores and sets a flag;
; 14 of the 16 workgroups of a (branch, batch) then sum the 16 partials of their slab in a fixed order
; The flag line is cleared by the head-0 workgroup, which announces that through debug[group].
; @launch grid=(256,1,1) block=(256,1,1) lds=163840
.amdgcn_target "amdgcn-amd-amdhsa--gfx950"
.text
"""

KD = """.amdhsa_kernel {label}
  .amdhsa_next_free_vgpr 512
  .amdhsa_next_free_sgpr 102
  .amdhsa_accum_offset 256
  .amdhsa_group_segment_fixed_size 0
  .amdhsa_kernarg_size 104
  .amdhsa_user_sgpr_count 2
  .amdhsa_user_sgpr_kernarg_segment_ptr 1
  .amdhsa_system_sgpr_workgroup_id_x 1
  .amdhsa_float_denorm_mode_32 3
.end_amdhsa_kernel
"""


def ablate(ins, what):
    out = []
    step = 0
    for x in ins:
        if x.text.startswith("; step "):
            step = int(x.text.split()[2][:-1])
        if x.text.startswith("; publish"):
            step = 99
        sm = 34 <= step <= 39
        if "v" in what and sm and x.kind == "valu" and not x.text.startswith("v_add_u32"):
            continue
        if "w" in what and sm and x.text.startswith("ds_write_b128"):
            continue
        if "r" in what and 37 <= step <= 40 and x.text.startswith("ds_read_b128 a"):
            continue
        if "m" in what and x.kind == "mfma":
            continue
        if "p" in what and step < 99 and (x.text.startswith("ds_write_b64") or x.text.startswith("v_cvt_pk_bf16_f32 v4")):
            continue
        out.append(x)
    return out


def build(cfg):
    g = Gen(cfg)
    g.main()
    if cfg["abl"]:
        g.o = ablate(g.o, cfg["abl"])
    label = NAME + "_kernel"
    s = HEADER + f".globl {label}\n.p2align 8\n.type {label},@function\n{label}:\n"
    s += render(pad_hazards(g.o))
    s += '.section .rodata,"a"\n.p2align 6\n' + KD.format(label=label)
    return s


if __name__ == "__main__":
    ap = argparse.ArgumentParser()
    ap.add_argument("-o", default="cdna_kernels/" + NAME + ".s")
    ap.add_argument("opts", nargs="*")
    a = ap.parse_args()
    cfg = dict(DEFAULTS)
    for o in a.opts:
        k, v = o.split("=", 1)
        assert k in cfg, k
        cfg[k] = type(cfg[k])(v.replace("+", " "))
    open(a.o, "w").write(build(cfg))
    print("wrote", a.o, " ".join(a.opts), file=sys.stderr)
```
